```python
import torch

def _softmax(x, axis=-1):
    return torch.softmax(x, dim=axis)
def _gelu(x):
    return torch.nn.functional.gelu(x, approximate="tanh")
def _silu(x):
    return torch.nn.functional.silu(x)
def _sigmoid(x):
    return torch.sigmoid(x)
def _layernorm(x, axis=-1, eps=1e-5):
    m = x.mean(dim=axis, keepdim=True)
    v = x.var(dim=axis, keepdim=True, unbiased=False)
    return (x - m) / torch.sqrt(v + eps)
def _scatter_add(tgt, idx, src, axis=0):
    return tgt.clone().index_add_(axis, idx, src)
def _segment_sum(src, seg, n):
    out = torch.zeros((n,) + src.shape[1:], dtype=src.dtype)
    return out.index_add_(0, seg, src)
def _pad(x, pw):
    flat = tuple(v for pair in reversed(pw) for v in pair)
    return torch.nn.functional.pad(x, flat)

kernel_name = 'standalone__gqa_block_cached__near_ridge'

def setup_inputs():

    _w = (lambda a: (lambda t: t.to(torch.bfloat16) if t.is_floating_point() else t)(torch.as_tensor(a)))
    B, Sq, D = 32, 32, 512
    Hq, Hkv, Sk, Dh = 32, 8, 512, 128
    assert Hq % Hkv == 0, (Hq, Hkv)
    return {
        "x": _w((lambda *s: torch.randn(*s, dtype=torch.bfloat16) * 0.8)(B, Sq, D)),
        "k_cache": _w((lambda *s: torch.randn(*s, dtype=torch.bfloat16) * 0.8)(B, Hkv, Sk, Dh)),
        "v_cache": _w((lambda *s: torch.randn(*s, dtype=torch.bfloat16) * 0.05)(B, Hkv, Sk, Dh)),
        "wq": _w((lambda *s: torch.randn(*s, dtype=torch.bfloat16) * 0.8)(D, Hq * Dh) * (D ** -0.5)),
        "wo": _w((lambda *s: torch.randn(*s, dtype=torch.bfloat16) * 0.05)(Hq * Dh, D) * ((Hq * Dh) ** -0.5)),
    }

def reference(x, k_cache, v_cache, wq, wo):
    B, Sq, D = x.shape
    Hq, Dh = 32, 128
    Hkv = k_cache.shape[1]
    rep = Hq // Hkv
    q = (lambda x, *d: x.permute(*d))((x @ wq).reshape(B, Sq, Hq, Dh), 0, 2, 1, 3)
    k = (lambda x, n, axis: torch.repeat_interleave(x, n, dim=axis))(k_cache, rep, axis=1)
    v = (lambda x, n, axis: torch.repeat_interleave(x, n, dim=axis))(v_cache, rep, axis=1)
    scores = torch.einsum("bhqd,bhkd->bhqk", q, k) * (Dh ** -0.5)
    p = _softmax(scores, axis=-1)
    o = torch.einsum("bhqk,bhkd->bhqd", p, v)
    return (lambda x, *d: x.permute(*d))(o, 0, 2, 1, 3).reshape(B, Sq, Hq * Dh) @ wo
```

```python
class Asm:
    def __init__(self):
        self.out = []
        self.slot = 0
        self.w_valu = {}
        self.w_trans = {}
        self.w_mfma = {}
        self.st_rd = {}
        self.sg_valu = {}
        self.m0_w = -100
        self.vm = []
        self.lg = []
        self.nops = 0

    def raw(self, text, states=1):
        self.out.append("    " + text)
        self.slot += states

    def comment(self, text):
        self.out.append("    ; " + text)

    def label(self, name):
        self.out.append(name + ":")

    def nop(self, n):
        while n > 0:
            k = min(n, 16)
            self.raw("s_nop %d" % (k - 1), k)
            self.nops += k
            n -= k

    def _need(self, since, n):
        gap = self.slot - since - 1
        return max(0, n - gap)

    def wait_vm(self, n):
        if len(self.vm) > n:
            self.raw("s_waitcnt vmcnt(%d)" % n)
            del self.vm[: len(self.vm) - n]

    def wait_lg(self, n):
        if len(self.lg) > n:
            self.raw("s_waitcnt lgkmcnt(%d)" % n)
            del self.lg[: len(self.lg) - n]

    def _auto_wait(self, regs):
        nv = None
        for idx in range(len(self.vm) - 1, -1, -1):
            if self.vm[idx] & regs:
                nv = len(self.vm) - 1 - idx
                break
        nl = None
        for idx in range(len(self.lg) - 1, -1, -1):
            if self.lg[idx] & regs:
                nl = len(self.lg) - 1 - idx
                break
        if nv is not None and nl is not None:
            self.raw("s_waitcnt vmcnt(%d) lgkmcnt(%d)" % (nv, nl))
            del self.vm[: len(self.vm) - nv]
            del self.lg[: len(self.lg) - nl]
        elif nv is not None:
            self.wait_vm(nv)
        elif nl is not None:
            self.wait_lg(nl)

    def ins(self, kind, text, rd=(), wr=(), srd=(), swr=(), chain=None, wide_store=False, uses_m0=False):
        rd = set(rd)
        wr = set(wr)
        allr = rd | wr
        self._auto_wait(allr)
        if kind in ("vld", "vst", "dma") and len(self.vm) >= 63:
            self.wait_vm(62)
        if kind in ("dsr", "dsw") and len(self.lg) >= 15:
            self.wait_lg(14)
        pad = 0
        for r in allr:
            if r in self.w_mfma:
                s, d = self.w_mfma[r]
                if kind == "mfma":
                    if chain is not None and d == chain[0] and chain[0] <= r < chain[0] + 16 and r not in chain[1]:
                        continue
                    if r in wr and r not in rd:
                        continue
                    pad = max(pad, self._need(s, 12))
                else:
                    pad = max(pad, self._need(s, 12))
        if kind == "mfma":
            for r in rd:
                if r in self.w_valu:
                    pad = max(pad, self._need(self.w_valu[r], 2))
        if kind in ("valu", "perml", "rfl"):
            for r in rd:
                if r in self.w_trans:
                    pad = max(pad, self._need(self.w_trans[r], 1))
        if kind == "perml":
            for r in rd:
                if r in self.w_valu:
                    pad = max(pad, self._need(self.w_valu[r], 2))
        if kind == "rfl":
            for r in rd:
                if r in self.w_valu:
                    pad = max(pad, self._need(self.w_valu[r], 1))
        for r in wr:
            if r in self.st_rd:
                pad = max(pad, self._need(self.st_rd[r], 2))
        for s in srd:
            if s in self.sg_valu:
                n = 5 if kind in ("vld", "vst", "dma") else 2
                pad = max(pad, self._need(self.sg_valu[s], n))
        if uses_m0:
            pad = max(pad, self._need(self.m0_w, 1))
        if pad:
            self.nop(pad)
        me = self.slot
        self.raw(text)
        if kind in ("valu", "perml", "rfl", "trans"):
            for r in wr:
                self.w_valu[r] = me
                self.w_mfma.pop(r, None)
                if kind == "trans":
                    self.w_trans[r] = me
                else:
                    self.w_trans.pop(r, None)
            for s in swr:
                self.sg_valu[s] = me
        elif kind == "mfma":
            d = min(wr)
            for r in wr:
                self.w_mfma[r] = (me, d)
                self.w_valu.pop(r, None)
                self.w_trans.pop(r, None)
        elif kind in ("vld", "vst", "dma"):
            self.vm.append(frozenset(wr))
            for r in wr:
                self.w_valu.pop(r, None); self.w_mfma.pop(r, None); self.w_trans.pop(r, None)
            if wide_store:
                for r in rd:
                    self.st_rd[r] = me
        elif kind in ("dsr", "dsw"):
            self.lg.append(frozenset(wr))
            for r in wr:
                self.w_valu.pop(r, None); self.w_mfma.pop(r, None); self.w_trans.pop(r, None)
        elif kind == "salu":
            for s in swr:
                self.sg_valu.pop(s, None)
                if s == "m0":
                    self.m0_w = me

    def valu(self, text, wr=(), rd=(), **kw):
        self.ins("valu", text, rd, wr, **kw)

    def trans(self, text, wr=(), rd=()):
        self.ins("trans", text, rd, wr)

    def salu(self, text, swr=()):
        self.ins("salu", text, swr=swr)

    def mfma(self, d, a, b, zero=False):
        D = set(range(d, d + 16)); A = set(range(a, a + 4)); B = set(range(b, b + 4))
        if zero:
            self.ins("mfma", "v_mfma_f32_32x32x16_bf16 v[%d:%d], v[%d:%d], v[%d:%d], 0" % (d, d + 15, a, a + 3, b, b + 3),
                     rd=A | B, wr=D)
        else:
            self.ins("mfma", "v_mfma_f32_32x32x16_bf16 v[%d:%d], v[%d:%d], v[%d:%d], v[%d:%d]" % (d, d + 15, a, a + 3, b, b + 3, d, d + 15),
                     rd=A | B | D, wr=D, chain=(d, A | B))

    def barrier(self):
        self.raw("s_barrier")

    def text(self):
        return "\n".join(self.out) + "\n"


def R(a, n):
    return list(range(a, a + n))
```

```python
import sys, struct, math
sys.path.insert(0, "work")
from asmlib import Asm, R

NAME = "standalone__gqa_block_cached__near_ridge"
K1 = NAME + "_kernel"
K2 = "reduce_kernel"

KRING = 0
VRING = 65536
XO = 131072
LDS_BYTES = 163840

SRD_X, SRD_K, SRD_V, SRD_WQ, SRD_WO, SRD_WS = 32, 36, 40, 44, 48, 52
S_SELLO, S_SELHI, S_C = 56, 57, 58
S_ROW = 60
S_WOOFF = 68
S_ST = 70
S_T0 = 76

def f32bits(x):
    return struct.unpack("<I", struct.pack("<f", x))[0]

CSCALE = (128.0 ** -0.5) * math.log2(math.e)

def srd(a, base_lo, dst, size):
    a.salu("s_mov_b32 s%d, s%d" % (dst, base_lo))
    a.salu("s_and_b32 s%d, s%d, 0xffff" % (dst + 1, base_lo + 1))
    a.salu("s_mov_b32 s%d, 0x%x" % (dst + 2, size))
    a.salu("s_mov_b32 s%d, 0x00020000" % (dst + 3))

def producer(a, is_k):
    ring = KRING if is_k else VRING
    sr = SRD_K if is_k else SRD_V
    a.valu("v_and_b32 v3, 31, v1", [3], [1])
    a.valu("v_lshlrev_b32 v2, 10, v3", [2], [3])
    a.valu("v_lshrrev_b32 v3, 5, v1", [3], [1])
    a.valu("v_lshlrev_b32 v3, 4, v3", [3], [3])
    a.valu("v_add_u32 v2, v2, v3", [2], [2, 3])
    a.valu("v_lshrrev_b32 v8, 4, v1", [8], [1])
    a.valu("v_and_b32 v9, 15, v1", [9], [1])
    a.valu("v_lshlrev_b32 v10, 8, v8", [10], [8])
    for ii in range(4):
        if is_k:
            a.valu("v_add_u32 v11, %d, v8" % (4 * ii), [11], [8])
        else:
            a.valu("v_lshlrev_b32 v11, 2, v8", [11], [8])
            a.valu("v_or_b32 v11, %d, v11" % ii, [11], [11])
        a.valu("v_xor_b32 v11, v9, v11", [11], [9, 11])
        a.valu("v_lshlrev_b32 v11, 4, v11", [11], [11])
        a.valu("v_add_u32 v%d, v10, v11" % (4 + ii), [4 + ii], [10, 11])
    a.salu("s_lshl_b32 s76, s5, 15")
    a.salu("s_lshl_b32 s77, s2, 17")
    s0 = 0 if is_k else 16
    for s in range(s0, s0 + 16):
        a.salu("s_add_u32 s78, s76, %d" % (s * 32))
        a.salu("s_mov_b32 m0, %d" % (XO + s * 1024), swr=["m0"])
        a.ins("dma", "buffer_load_dwordx4 v2, s[%d:%d], s78 offen lds" % (SRD_X, SRD_X + 3), rd=[2], uses_m0=True)

    def tile(j):
        slot = j & 3
        for g in range(4):
            a.salu("s_add_u32 s78, s77, %d" % (j * 16384 + g * 4096))
            a.salu("s_mov_b32 m0, %d" % (ring + slot * 16384 + g * 4096), swr=["m0"])
            for ii in range(4):
                off = (" offset:%d" % (ii * 1024)) if ii else ""
                a.ins("dma", "buffer_load_dwordx4 v%d, s[%d:%d], s78 offen%s lds" % (4 + ii, sr, sr + 3, off),
                      rd=[4 + ii], uses_m0=True)

    B = a.barrier
    W = a.wait_vm
    if is_k:
        tile(0); tile(1); W(32); B()
        tile(2); W(32); tile(3); B()
        W(32); B()
        tile(4); W(32); B()
        tile(5); W(32); B()
        tile(6); W(32); B()
        tile(7); W(32); B()
        W(16); B()
        W(0); B()
    else:
        tile(0); tile(1); W(32); B()
        tile(2); W(32); tile(3); B()
        B()
        B()
        W(32); B()
        tile(4); W(32); B()
        tile(5); W(32); B()
        tile(6); W(32); B()
        tile(7); W(32); B()
        W(16); B()
        W(0); B()
    a.raw("s_endpgm")

V_WQOFF = 2
V_WOOFF = 3
V_XO = 5
V_XOW = 14
V_L = 8
V_ALPHA = 9
V_T0, V_T1 = 10, 15
V_M = [6, 12]
V_MC = [7, 11]
V_SUM = [248, 249, 250, 251]
V_ST = 13
KADDR = 16
VADDR = 24
QF = 32
OACC = 64
SBUF = 128
FRAG = 192
LBUF = 128
NST = 6
AFR = 224
BFR = 240

def proj_phase(a, which):
    def loads(s):
        proj_loads(a, which, s)
    def perms(s, j):
        buf = LBUF + (s % NST) * 16
        sel = S_SELLO if (j & 1) == 0 else S_SELHI
        half = j >> 1
        for p in range(4):
            lo = buf + (2 * p) * 2 + half
            hi = buf + (2 * p + 1) * 2 + half
            d = AFR + 4 * j + p
            a.valu("v_perm_b32 v%d, v%d, v%d, s%d" % (d, hi, lo, sel), [d], [hi, lo])
    def bread(s):
        d = BFR + (s & 1) * 4
        a.ins("dsr", "ds_read_b128 v[%d:%d], v%d offset:%d" % (d, d + 3, V_XO, s * 1024), rd=[V_XO], wr=R(d, 4))
    bread(0)
    bread(1)
    for j in range(4):
        perms(0, j)
    for s in range(32):
        for j in range(4):
            a.mfma(OACC + 16 * j, AFR + 4 * j, BFR + (s & 1) * 4, zero=(s == 0))
            if j == 3 and s + 2 < 32:
                bread(s + 2)
            if s + 1 < 32:
                perms(s + 1, j)
            if j == 3 and s + NST < 32:
                loads(s + NST)

def proj_loads(a, which, s):
    buf = LBUF + (s % NST) * 16
    if which == 'q':
        for r in range(8):
            d = buf + 2 * r
            a.ins("vld", "buffer_load_dwordx2 v[%d:%d], v%d, s[%d:%d], s%d offen" % (d, d + 1, V_WQOFF, SRD_WQ, SRD_WQ + 3, S_ROW + r),
                  rd=[V_WQOFF], wr=[d, d + 1])
            a.salu("s_add_u32 s%d, s%d, 0x20000" % (S_ROW + r, S_ROW + r))
    else:
        for jj in range(8):
            aa, r = jj >> 2, jj & 3
            d = buf + 2 * jj
            off = (" offset:%d" % (r * 1024)) if r else ""
            a.ins("vld", "buffer_load_dwordx2 v[%d:%d], v%d, s[%d:%d], s%d offen%s" % (d, d + 1, V_WOOFF + aa, SRD_WO, SRD_WO + 3, S_WOOFF, off),
                  rd=[V_WOOFF + aa], wr=[d, d + 1])
        a.salu("s_add_u32 s%d, s%d, 0x4000" % (S_WOOFF, S_WOOFF))

def softmax_items(i):
    it = []
    sb = SBUF + 32 * (i & 1)
    m_old, m_new = V_M[(i + 1) & 1], V_M[i & 1]
    mc_old, mc_new = V_MC[(i + 1) & 1], V_MC[i & 1]
    def add(cost, fn, after=-1):
        it.append((cost, after, fn))
    def v(text, wr, rd, cost=4, after=-1):
        add(cost, lambda a: a.valu(text, wr, rd), after)
    def tr(text, wr, rd):
        add(8, lambda a: a.trans(text, wr, rd))
    tA, tB = V_T0, V_T1
    chains = []
    for (t, base) in ((tA, sb), (tB, sb + 16)):
        c = [("v_max3_f32 v%d, v%d, v%d, v%d" % (t, base, base + 1, base + 2), [t], [base, base + 1, base + 2])]
        for k in range(3, 15, 2):
            c.append(("v_max3_f32 v%d, v%d, v%d, v%d" % (t, t, base + k, base + k + 1), [t], [t, base + k, base + k + 1]))
        chains.append(c)
    for x, y in zip(*chains):
        v(*x); v(*y)
    v("v_max3_f32 v%d, v%d, v%d, v%d" % (tA, tA, sb + 15, sb + 31), [tA], [tA, sb + 15, sb + 31])
    if i > 0:
        v("v_max3_f32 v%d, v%d, v%d, v%d" % (tA, tA, tB, m_old), [tA], [tA, tB, m_old])
    else:
        v("v_max_f32 v%d, v%d, v%d" % (tA, tA, tB), [tA], [tA, tB])
    v("v_mov_b32 v%d, v%d" % (tB, tA), [tB], [tA])
    add(4, lambda a: a.ins("perml", "v_permlane32_swap_b32 v%d, v%d" % (tA, tB), rd=[tA, tB], wr=[tA, tB]))
    v("v_max_f32 v%d, v%d, v%d" % (m_new, tA, tB), [m_new], [tA, tB])
    v("v_mul_f32 v%d, s%d, v%d" % (mc_new, S_C, m_new), [mc_new], [m_new])
    if i > 0:
        v("v_sub_f32 v%d, v%d, v%d" % (V_ALPHA, mc_old, mc_new), [V_ALPHA], [mc_old, mc_new])
        tr("v_exp_f32 v%d, v%d" % (V_ALPHA, V_ALPHA), [V_ALPHA], [V_ALPHA])
    nsum = len(V_SUM)
    started = [False] * nsum
    pend = {}
    for g in range(4):
        b8 = sb + 8 * g
        for k in range(0, 8, 2):
            for kk in (k, k + 1):
                r = b8 + kk
                v("v_fma_f32 v%d, v%d, s%d, -v%d" % (r, r, S_C, mc_new), [r], [r, mc_new])
            for kk in (k, k + 1):
                r = b8 + kk
                tr("v_exp_f32 v%d, v%d" % (r, r), [r], [r])
        for k in range(8):
            r = b8 + k
            si = k % nsum
            sr = V_SUM[si]
            if not started[si]:
                if si not in pend:
                    pend[si] = r
                else:
                    r0 = pend.pop(si)
                    v("v_add_f32 v%d, v%d, v%d" % (sr, r0, r), [sr], [r0, r])
                    started[si] = True
            else:
                v("v_add_f32 v%d, v%d, v%d" % (sr, sr, r), [sr], [sr, r])
        assert not pend or g == 0
        if g == 0:
            assert not pend, pend
        for p in range(4):
            d = b8 + p
            v("v_cvt_pk_bf16_f32 v%d, v%d, v%d" % (d, b8 + 2 * p, b8 + 2 * p + 1), [d], [b8 + 2 * p, b8 + 2 * p + 1])
    v("v_add_f32 v%d, v%d, v%d" % (V_SUM[0], V_SUM[0], V_SUM[1]), [V_SUM[0]], [V_SUM[0], V_SUM[1]])
    v("v_add_f32 v%d, v%d, v%d" % (V_SUM[2], V_SUM[2], V_SUM[3]), [V_SUM[2]], [V_SUM[2], V_SUM[3]])
    if i > 0:
        v("v_fma_f32 v%d, v%d, v%d, v%d" % (V_L, V_L, V_ALPHA, V_SUM[0]), [V_L], [V_L, V_ALPHA, V_SUM[0]])
        v("v_add_f32 v%d, v%d, v%d" % (V_L, V_L, V_SUM[2]), [V_L], [V_L, V_SUM[2]])
        for r in range(OACC, OACC + 64):
            v("v_mul_f32 v%d, v%d, v%d" % (r, r, V_ALPHA), [r], [r, V_ALPHA], after=17)
    else:
        v("v_add_f32 v%d, v%d, v%d" % (V_L, V_SUM[0], V_SUM[2]), [V_L], [V_SUM[0], V_SUM[2]])
    return it

frag_ctr = [0]

def iter_items(i):
    M = []
    if 1 <= i <= 8:
        j = i - 1
        slot = j & 3
        pb = SBUF + 32 * (j & 1)
        for t in range(4):
            for u in range(4):
                f = FRAG + 4 * (frag_ctr[0] % 8); frag_ctr[0] += 1
                def ld(a, f=f, u=u, t=t, slot=slot):
                    for aa in range(2):
                        va = VADDR + 2 * u + aa
                        a.ins("dsr", "ds_read_b64_tr_b16 v[%d:%d], v%d offset:%d" % (f + 2 * aa, f + 2 * aa + 1, va, slot * 16384 + t * 4096 + aa * 2048),
                              rd=[va], wr=[f + 2 * aa, f + 2 * aa + 1])
                pf = pb + 16 * (t >> 1) + 8 * (t & 1)
                def mm(a, f=f, u=u, pf=pf, z=(j == 0 and t == 0)):
                    a.mfma(OACC + 16 * u, f, pf, zero=z)
                M.append((ld, mm, 8))
    if -1 <= i <= 6:
        j = i + 1
        slot = j & 3
        sb = SBUF + 32 * (j & 1)
        for tt in range(2):
            for ez in range(8):
                f = FRAG + 4 * (frag_ctr[0] % 8); frag_ctr[0] += 1
                def ld(a, f=f, ez=ez, tt=tt, slot=slot):
                    ka = KADDR + ez
                    a.ins("dsr", "ds_read_b128 v[%d:%d], v%d offset:%d" % (f, f + 3, ka, slot * 16384 + tt * 8192),
                          rd=[ka], wr=R(f, 4))
                def mm(a, f=f, ez=ez, tt=tt, sb=sb):
                    a.mfma(sb + 16 * tt, f, QF + 4 * ez, zero=(ez == 0))
                M.append((ld, mm, 4))
    return M

DPRE = 5

def run_iter(a, i):
    M = iter_items(i)
    V = softmax_items(i) if 0 <= i <= 7 else []
    a.comment("---- iteration %d" % i)
    for n in range(min(DPRE, len(M))):
        M[n][0](a)
    vi = 0
    cum = 0
    head = 110 if V else 0
    tot = sum(x[0] for x in V)
    while vi < len(V) and cum + V[vi][0] <= head and V[vi][1] < 0:
        V[vi][2](a); cum += V[vi][0]; vi += 1
    nM = len(M)
    rest = tot - cum
    base = cum
    for n in range(nM):
        M[n][1](a)
        if n + DPRE < nM:
            M[n + DPRE][0](a)
        target = base + rest * (n + 1) / nM
        while vi < len(V) and cum + V[vi][0] / 2 <= target and V[vi][1] <= n:
            V[vi][2](a); cum += V[vi][0]; vi += 1
    while vi < len(V):
        V[vi][2](a); vi += 1

def consumer(a):
    a.valu("v_and_b32 v16, 31, v1", [16], [1])
    a.valu("v_lshrrev_b32 v17, 5, v1", [17], [1])
    a.salu("s_lshl_b32 s76, s4, 2")
    a.salu("s_add_u32 s76, s76, s3")
    a.salu("s_lshl_b32 s76, s76, 8")
    a.valu("v_lshlrev_b32 v2, 16, v17", [2], [17])
    a.valu("v_lshlrev_b32 v18, 3, v16", [18], [16])
    a.valu("v_add_u32 v2, v2, v18", [2], [2, 18])
    a.valu("v_add_u32 v2, s76, v2", [2], [2])
    for r in range(8):
        a.salu("s_mov_b32 s%d, %d" % (S_ROW + r, r * 8192))
    for s in range(NST):
        proj_loads(a, 'q', s)
    a.salu("s_lshl_b32 s76, s3, 8")
    a.valu("v_lshlrev_b32 v3, 12, v17", [3], [17])
    a.valu("v_add_u32 v3, v3, v18", [3], [3, 18])
    a.valu("v_add_u32 v3, s76, v3", [3], [3])
    a.valu("v_add_u32 v4, 0x2000, v3", [4], [3])
    a.salu("s_lshl_b32 s%d, s4, 19" % S_WOOFF)
    a.valu("v_lshlrev_b32 v13, 4, v1", [13], [1])
    a.valu("v_add_u32 v5, 0x%x, v13" % XO, [5], [13])
    a.salu("s_lshl_b32 s76, s3, 13")
    a.valu("v_add_u32 v14, s76, v5", [14], [5])
    a.salu("s_lshl_b32 s76, s2, 2")
    a.salu("s_add_u32 s76, s76, s3")
    a.salu("s_lshl_b32 s76, s76, 14")
    for j in range(4):
        a.salu("s_add_u32 s%d, s76, %d" % (S_ST + j, j * 4096))
    a.valu("v_lshrrev_b32 v18, 4, v1", [18], [1])
    a.valu("v_and_b32 v18, 1, v18", [18], [18])
    a.valu("v_lshrrev_b32 v19, 2, v1", [19], [1])
    a.valu("v_and_b32 v19, 3, v19", [19], [19])
    a.valu("v_and_b32 v20, 3, v1", [20], [1])
    a.valu("v_lshrrev_b32 v21, 1, v20", [21], [20])
    a.valu("v_xor_b32 v21, v21, v17", [21], [21, 17])
    a.valu("v_lshlrev_b32 v22, 2, v19", [22], [19])
    a.valu("v_or_b32 v21, v21, v22", [21], [21, 22])
    a.valu("v_lshlrev_b32 v22, 1, v18", [22], [18])
    a.valu("v_or_b32 v21, v21, v22", [21], [21, 22])
    a.valu("v_lshlrev_b32 v21, 4, v21", [21], [21])
    a.valu("v_and_b32 v20, 1, v20", [20], [20])
    a.valu("v_lshlrev_b32 v20, 3, v20", [20], [20])
    a.valu("v_or_b32 v21, v21, v20", [21], [21, 20])
    a.valu("v_lshlrev_b32 v22, 2, v17", [22], [17])
    a.valu("v_add_u32 v22, v22, v19", [22], [22, 19])
    a.valu("v_lshlrev_b32 v22, 8, v22", [22], [22])
    a.valu("v_add_u32 v21, v21, v22", [21], [21, 22])
    a.valu("v_add_u32 v21, 0x%x, v21" % VRING, [21], [21])
    for u in range(4):
        for aa in range(2):
            d = VADDR + 2 * u + aa
            a.valu("v_xor_b32 v%d, 0x%x, v21" % (d, (4 * u + 2 * aa) << 4), [d], [21])
    a.valu("v_and_b32 v18, 15, v16", [18], [16])
    a.valu("v_lshlrev_b32 v19, 1, v17", [19], [17])
    a.valu("v_xor_b32 v18, v18, v19", [18], [18, 19])
    a.valu("v_lshlrev_b32 v18, 4, v18", [18], [18])
    a.valu("v_lshlrev_b32 v19, 8, v16", [19], [16])
    a.valu("v_add_u32 v15, v18, v19", [15], [18, 19])
    for e in range(4):
        for z in range(2):
            d = KADDR + 2 * e + z
            a.valu("v_xor_b32 v%d, 0x%x, v15" % (d, (4 * e + z) << 4), [d], [15])
    a.barrier()
    proj_phase(a, 'q')
    for e in range(4):
        for z in range(2):
            for p in range(4):
                i = 4 * e + 2 * z + (p >> 1)
                t0 = OACC + 16 * (2 * (p & 1)) + i
                t1 = t0 + 16
                d = QF + 4 * (2 * e + z) + p
                a.valu("v_cvt_pk_bf16_f32 v%d, v%d, v%d" % (d, t0, t1), [d], [t0, t1])
    for i in range(-1, 9):
        a.wait_lg(0)
        a.barrier()
        run_iter(a, i)
    for s in range(NST):
        proj_loads(a, 'o', s)
    a.valu("v_mov_b32 v%d, v%d" % (V_T1, V_L), [V_T1], [V_L])
    a.ins("perml", "v_permlane32_swap_b32 v%d, v%d" % (V_L, V_T1), rd=[V_L, V_T1], wr=[V_L, V_T1])
    a.valu("v_add_f32 v%d, v%d, v%d" % (V_L, V_L, V_T1), [V_L], [V_L, V_T1])
    a.trans("v_rcp_f32 v%d, v%d" % (V_L, V_L), [V_L], [V_L])
    for u in range(4):
        for t in range(2):
            for p in range(4):
                r0 = OACC + 16 * u + 8 * t + 2 * p
                a.valu("v_mul_f32 v%d, v%d, v%d" % (r0, r0, V_L), [r0], [r0, V_L])
                a.valu("v_mul_f32 v%d, v%d, v%d" % (r0 + 1, r0 + 1, V_L), [r0 + 1], [r0 + 1, V_L])
            for p in range(4):
                r0 = OACC + 16 * u + 8 * t + 2 * p
                d = QF + 4 * (2 * u + t) + p
                a.valu("v_cvt_pk_bf16_f32 v%d, v%d, v%d" % (d, r0, r0 + 1), [d], [r0, r0 + 1])
            d = QF + 4 * (2 * u + t)
            a.ins("dsw", "ds_write_b128 v%d, v[%d:%d] offset:%d" % (V_XOW, d, d + 3, (2 * u + t) * 1024), rd=[V_XOW] + R(d, 4))
    a.wait_lg(0)
    a.barrier()
    proj_phase(a, 'o')
    for j in range(4):
        for g in range(4):
            d = OACC + 16 * j + 4 * g
            off = (" offset:%d" % (g * 1024)) if g else ""
            a.ins("vst", "buffer_store_dwordx4 v[%d:%d], v%d, s[%d:%d], s%d offen%s" % (d, d + 3, V_ST, SRD_WS, SRD_WS + 3, S_ST + j, off),
                  rd=[V_ST] + R(d, 4), wide_store=True)
    a.raw("s_endpgm")

def kernel1():
    out = []
    a = Asm()
    a.label(K1)
    a.raw("s_cmp_ge_u32 s2, 256")
    a.raw("s_cbranch_scc1 L_k1_end")
    a.raw("s_load_dwordx16 s[16:31], s[0:1], 0")
    a.valu("v_and_b32 v1, 63, v0", [1], [0])
    a.valu("v_lshrrev_b32 v2, 6, v0", [2], [0])
    a.ins("rfl", "v_readfirstlane_b32 s3, v2", rd=[2], swr=["s3"])
    a.salu("s_and_b32 s4, s2, 7")
    a.salu("s_lshr_b32 s5, s2, 3")
    a.salu("s_mov_b32 s%d, 0x05040100" % S_SELLO)
    a.salu("s_mov_b32 s%d, 0x07060302" % S_SELHI)
    a.salu("s_mov_b32 s%d, 0x%08x" % (S_C, f32bits(CSCALE)))
    a.raw("s_waitcnt lgkmcnt(0)")
    srd(a, 16, SRD_X, 0x100000)
    srd(a, 18, SRD_K, 0x2000000)
    srd(a, 20, SRD_V, 0x2000000)
    srd(a, 22, SRD_WQ, 0x400000)
    srd(a, 24, SRD_WO, 0x400000)
    srd(a, 30, SRD_WS, 0x1000000)
    a.raw("s_nop 4")
    a.raw("s_cmp_eq_u32 s3, 4")
    a.raw("s_cbranch_scc1 L_kprod")
    a.raw("s_cmp_eq_u32 s3, 5")
    a.raw("s_cbranch_scc1 L_vprod")
    out.append(a.text())
    c = Asm(); consumer(c); out.append(c.text())
    sys.stderr.write("consumer: %d slots, %d nop states\n" % (c.slot, c.nops))
    p = Asm(); p.label("L_kprod"); producer(p, True); out.append(p.text())
    p = Asm(); p.label("L_vprod"); producer(p, False); out.append(p.text())
    out.append("L_k1_end:\n    s_endpgm\n")
    return "".join(out)

def kernel2():
    a = Asm()
    a.label(K2)
    a.raw("s_cmp_ge_u32 s2, 256")
    a.raw("s_cbranch_scc1 L_k2_end")
    a.raw("s_load_dwordx2 s[16:17], s[0:1], 40")
    a.raw("s_load_dwordx2 s[18:19], s[0:1], 56")
    a.valu("v_and_b32 v1, 63, v0", [1], [0])
    a.valu("v_lshrrev_b32 v2, 6, v0", [2], [0])
    a.salu("s_lshr_b32 s5, s2, 3")
    a.salu("s_lshr_b32 s6, s2, 1")
    a.salu("s_and_b32 s6, s6, 3")
    a.salu("s_and_b32 s7, s2, 1")
    a.salu("s_lshl_b32 s7, s7, 1")
    a.valu("v_add_u32 v2, s7, v2", [2], [2])
    a.valu("v_lshlrev_b32 v3, 4, v1", [3], [1])
    a.valu("v_lshlrev_b32 v4, 10, v2", [4], [2])
    a.valu("v_add_u32 v3, v3, v4", [3], [3, 4])
    for j in range(4):
        a.valu("v_add_u32 v%d, %d, v3" % (4 + j, j * 4096), [4 + j], [3])
    a.salu("s_lshl_b32 s8, s5, 19")
    a.salu("s_lshl_b32 s9, s6, 14")
    a.salu("s_add_u32 s8, s8, s9")
    for hk in range(8):
        a.salu("s_add_u32 s%d, s8, %d" % (40 + hk, hk * 65536))
    a.valu("v_and_b32 v8, 31, v1", [8], [1])
    a.valu("v_lshlrev_b32 v8, 10, v8", [8], [8])
    a.valu("v_lshrrev_b32 v9, 5, v1", [9], [1])
    a.valu("v_lshlrev_b32 v9, 5, v9", [9], [9])
    a.valu("v_add_u32 v8, v8, v9", [8], [8, 9])
    a.valu("v_lshlrev_b32 v9, 6, v2", [9], [2])
    a.valu("v_add_u32 v8, v8, v9", [8], [8, 9])
    a.salu("s_lshl_b32 s10, s5, 15")
    a.salu("s_lshl_b32 s11, s6, 8")
    a.salu("s_add_u32 s10, s10, s11")
    a.raw("s_waitcnt lgkmcnt(0)")
    srd(a, 16, 20, 0x100000)
    srd(a, 18, 24, 0x1000000)
    base = 16
    for hk in range(8):
        for j in range(4):
            d = base + (hk * 4 + j) * 4
            a.ins("vld", "buffer_load_dwordx4 v[%d:%d], v%d, s[24:27], s%d offen" % (d, d + 3, 4 + j, 40 + hk), rd=[4 + j], wr=R(d, 4))
    for hk in range(1, 8):
        for j in range(4):
            for ii in range(4):
                d = base + j * 4 + ii
                s = base + (hk * 4 + j) * 4 + ii
                a.valu("v_add_f32 v%d, v%d, v%d" % (d, d, s), [d], [d, s])
    o = 160
    for ii in range(4):
        for pr in range(2):
            d = o + 2 * ii + pr
            x0 = base + (2 * pr) * 4 + ii
            x1 = base + (2 * pr + 1) * 4 + ii
            a.valu("v_cvt_pk_bf16_f32 v%d, v%d, v%d" % (d, x0, x1), [d], [x0, x1])
    a.ins("vst", "buffer_store_dwordx4 v[%d:%d], v8, s[20:23], s10 offen" % (o, o + 3), rd=[8] + R(o, 4), wide_store=True)
    a.ins("vst", "buffer_store_dwordx4 v[%d:%d], v8, s[20:23], s10 offen offset:16" % (o + 4, o + 7), rd=[8] + R(o + 4, 4), wide_store=True)
    a.label("L_k2_end")
    a.raw("s_endpgm")
    return a.text()

def desc(name, nv, ns=102):
    return """.amdhsa_kernel %s
  .amdhsa_next_free_vgpr %d
  .amdhsa_next_free_sgpr %d
  .amdhsa_accum_offset %d
  .amdhsa_group_segment_fixed_size 0
  .amdhsa_kernarg_size 64
  .amdhsa_user_sgpr_count 2
  .amdhsa_user_sgpr_kernarg_segment_ptr 1
  .amdhsa_system_sgpr_workgroup_id_x 1
.end_amdhsa_kernel
""" % (name, nv, ns, nv)

def main(path):
    hdr = """; Kernarg layout for this problem (64 bytes, ptrs only, base s[0:1]):
;   offset   0: x   8: k_cache  16: v_cache  24: wq  32: wo  40: d_out  48: d_debug  56: d_ws
; @launch kernel=%s grid=(256,1,1) block=(384,1,1) lds=%d
; @launch kernel=%s grid=(256,1,1) block=(128,1,1) lds=0
.amdgcn_target "amdgcn-amd-amdhsa--gfx950"
.text
""" % (K1, LDS_BYTES, K2)
    s = hdr
    for nm, body in ((K1, kernel1()), (K2, kernel2())):
        s += ".globl %s\n.p2align 8\n.type %s,@function\n" % (nm, nm) + body
    s += '.section .rodata,"a"\n.p2align 6\n' + desc(K1, 256) + ".p2align 6\n" + desc(K2, 192)
    open(path, "w").write(s)

if __name__ == "__main__":
    main(sys.argv[1] if len(sys.argv) > 1 else "cdna_kernels/%s.s" % NAME)
```

```python
class Asm:
    def __init__(self):
        self.out = []
        self.slot = 0
        self.w_valu = {}
        self.w_trans = {}
        self.w_mfma = {}
        self.st_rd = {}
        self.sg_valu = {}
        self.m0_w = -100
        self.vm = []
        self.lg = []
        self.nops = 0

    def raw(self, text, states=1):
        self.out.append("    " + text)
        self.slot += states

    def comment(self, text):
        self.out.append("    ; " + text)

    def label(self, name):
        self.out.append(name + ":")

    def nop(self, n):
        while n > 0:
            k = min(n, 16)
            self.raw("s_nop %d" % (k - 1), k)
            self.nops += k
            n -= k

    def _need(self, since, n):
        gap = self.slot - since - 1
        return max(0, n - gap)

    def wait_vm(self, n):
        if len(self.vm) > n:
            self.raw("s_waitcnt vmcnt(%d)" % n)
            del self.vm[: len(self.vm) - n]

    def wait_lg(self, n):
        if len(self.lg) > n:
            self.raw("s_waitcnt lgkmcnt(%d)" % n)
            del self.lg[: len(self.lg) - n]

    def _auto_wait(self, regs):
        nv = None
        for idx in range(len(self.vm) - 1, -1, -1):
            if self.vm[idx] & regs:
                nv = len(self.vm) - 1 - idx
                break
        nl = None
        for idx in range(len(self.lg) - 1, -1, -1):
            if self.lg[idx] & regs:
                nl = len(self.lg) - 1 - idx
                break
        if nv is not None and nl is not None:
            self.raw("s_waitcnt vmcnt(%d) lgkmcnt(%d)" % (nv, nl))
            del self.vm[: len(self.vm) - nv]
            del self.lg[: len(self.lg) - nl]
        elif nv is not None:
            self.wait_vm(nv)
        elif nl is not None:
            self.wait_lg(nl)

    def ins(self, kind, text, rd=(), wr=(), srd=(), swr=(), chain=None, wide_store=False, uses_m0=False):
        rd = set(rd)
        wr = set(wr)
        allr = rd | wr
        self._auto_wait(allr)
        if kind in ("vld", "vst", "dma") and len(self.vm) >= 63:
            self.wait_vm(62)
        if kind in ("dsr", "dsw") and len(self.lg) >= 15:
            self.wait_lg(14)
        pad = 0
        for r in allr:
            if r in self.w_mfma:
                s, d = self.w_mfma[r]
                if kind == "mfma":
                    if chain is not None and d == chain[0] and chain[0] <= r < chain[0] + 16 and r not in chain[1]:
                        continue
                    if r in wr and r not in rd:
                        continue
                    pad = max(pad, self._need(s, 12))
                else:
                    pad = max(pad, self._need(s, 12))
        if kind == "mfma":
            for r in rd:
                if r in self.w_valu:
                    pad = max(pad, self._need(self.w_valu[r], 2))
        if kind in ("valu", "perml", "rfl"):
            for r in rd:
                if r in self.w_trans:
                    pad = max(pad, self._need(self.w_trans[r], 1))
        if kind == "perml":
            for r in rd:
                if r in self.w_valu:
                    pad = max(pad, self._need(self.w_valu[r], 2))
        if kind == "rfl":
            for r in rd:
                if r in self.w_valu:
                    pad = max(pad, self._need(self.w_valu[r], 1))
        for r in wr:
            if r in self.st_rd:
                pad = max(pad, self._need(self.st_rd[r], 2))
        for s in srd:
            if s in self.sg_valu:
                n = 5 if kind in ("vld", "vst", "dma") else 2
                pad = max(pad, self._need(self.sg_valu[s], n))
        if uses_m0:
            pad = max(pad, self._need(self.m0_w, 1))
        if pad:
            self.nop(pad)
        me = self.slot
        self.raw(text)
        if kind in ("valu", "perml", "rfl", "trans"):
            for r in wr:
                self.w_valu[r] = me
                self.w_mfma.pop(r, None)
                if kind == "trans":
                    self.w_trans[r] = me
                else:
                    self.w_trans.pop(r, None)
            for s in swr:
                self.sg_valu[s] = me
        elif kind == "mfma":
            d = min(wr)
            for r in wr:
                self.w_mfma[r] = (me, d)
                self.w_valu.pop(r, None)
                self.w_trans.pop(r, None)
        elif kind in ("vld", "vst", "dma"):
            self.vm.append(frozenset(wr))
            for r in wr:
                self.w_valu.pop(r, None); self.w_mfma.pop(r, None); self.w_trans.pop(r, None)
            if wide_store:
                for r in rd:
                    self.st_rd[r] = me
        elif kind in ("dsr", "dsw"):
            self.lg.append(frozenset(wr))
            for r in wr:
                self.w_valu.pop(r, None); self.w_mfma.pop(r, None); self.w_trans.pop(r, None)
        elif kind == "salu":
            for s in swr:
                self.sg_valu.pop(s, None)
                if s == "m0":
                    self.m0_w = me

    def valu(self, text, wr=(), rd=(), **kw):
        self.ins("valu", text, rd, wr, **kw)

    def trans(self, text, wr=(), rd=()):
        self.ins("trans", text, rd, wr)

    def salu(self, text, swr=()):
        self.ins("salu", text, swr=swr)

    def mfma(self, d, a, b, zero=False):
        D = set(range(d, d + 16)); A = set(range(a, a + 4)); B = set(range(b, b + 4))
        if zero:
            self.ins("mfma", "v_mfma_f32_32x32x16_bf16 v[%d:%d], v[%d:%d], v[%d:%d], 0" % (d, d + 15, a, a + 3, b, b + 3),
                     rd=A | B, wr=D)
        else:
            self.ins("mfma", "v_mfma_f32_32x32x16_bf16 v[%d:%d], v[%d:%d], v[%d:%d], v[%d:%d]" % (d, d + 15, a, a + 3, b, b + 3, d, d + 15),
                     rd=A | B | D, wr=D, chain=(d, A | B))

    def mfma16(self, d, a, b, zero=False):
        D = set(range(d, d + 4)); A = set(range(a, a + 4)); B = set(range(b, b + 4))
        if zero:
            self.ins("mfma", "v_mfma_f32_16x16x32_bf16 v[%d:%d], v[%d:%d], v[%d:%d], 0" % (d, d + 3, a, a + 3, b, b + 3),
                     rd=A | B, wr=D)
        else:
            self.ins("mfma", "v_mfma_f32_16x16x32_bf16 v[%d:%d], v[%d:%d], v[%d:%d], v[%d:%d]" % (d, d + 3, a, a + 3, b, b + 3, d, d + 3),
                     rd=A | B | D, wr=D, chain=(d, A | B))

    def barrier(self):
        self.raw("s_barrier")

    def text(self):
        return "\n".join(self.out) + "\n"


def R(a, n):
    return list(range(a, a + n))
```

```python
import sys, struct, math
sys.path.insert(0, "work")
from asmlib import Asm, R

NAME = "standalone__gqa_block_cached__near_ridge"
K1 = NAME + "_kernel"
K2 = "reduce_kernel"

KRING = 0
VRING = 65536
XO = 131072
LDS_BYTES = 163840

SRD_X, SRD_K, SRD_V, SRD_WQ, SRD_WO, SRD_WS = 32, 36, 40, 44, 48, 52
S_SELLO, S_SELHI, S_C = 56, 57, 58
S_ROW = 60
S_WOOFF = 68
S_ST = 70
S_T0 = 76

def f32bits(x):
    return struct.unpack("<I", struct.pack("<f", x))[0]

CSCALE = (128.0 ** -0.5) * math.log2(math.e)
import os
PROF = int(os.environ.get("PROF", "0"))
VAR_A = int(os.environ.get("VAR_A", "0"))
_stamp = [0]
def stamp(a):
    if not PROF:
        return
    k = _stamp[0]; _stamp[0] += 1
    assert k < 11
    a.raw("s_memtime s[%d:%d]" % (80 + 2 * k, 81 + 2 * k))
def stamp_flush(a):
    if not PROF:
        return
    a.raw("s_cmp_lg_u32 s3, 0")
    a.raw("s_cbranch_scc1 L_noflush")
    a.raw("s_waitcnt lgkmcnt(0)")
    a.salu("s_lshl_b32 s76, s2, 8")
    a.salu("s_add_u32 s76, s76, 0x1000000")
    a.valu("v_mov_b32 v253, 0", [253], [])
    for k in range(_stamp[0]):
        a.valu("v_mov_b32 v252, s%d" % (80 + 2 * k), [252], [])
        a.ins("vst", "buffer_store_dword v252, v253, s[%d:%d], s76 offen offset:%d" % (SRD_WS, SRD_WS + 3, 4 * k), rd=[252, 253])
        a.raw("s_waitcnt vmcnt(0)")
    a.label("L_noflush")

def srd(a, base_lo, dst, size):
    a.salu("s_mov_b32 s%d, s%d" % (dst, base_lo))
    a.salu("s_and_b32 s%d, s%d, 0xffff" % (dst + 1, base_lo + 1))
    a.salu("s_mov_b32 s%d, 0x%x" % (dst + 2, size))
    a.salu("s_mov_b32 s%d, 0x00020000" % (dst + 3))

def producer(a, is_k):
    ring = KRING if is_k else VRING
    sr = SRD_K if is_k else SRD_V
    a.valu("v_and_b32 v3, 15, v1", [3], [1])
    a.valu("v_lshlrev_b32 v2, 10, v3", [2], [3])
    a.valu("v_lshrrev_b32 v3, 4, v1", [3], [1])
    a.valu("v_lshlrev_b32 v3, 4, v3", [3], [3])
    a.valu("v_add_u32 v2, v2, v3", [2], [2, 3])
    a.valu("v_lshrrev_b32 v8, 4, v1", [8], [1])
    a.valu("v_and_b32 v9, 15, v1", [9], [1])
    a.valu("v_lshlrev_b32 v10, 8, v8", [10], [8])
    for ii in range(4):
        if is_k:
            a.valu("v_add_u32 v11, %d, v8" % (4 * ii), [11], [8])
        else:
            a.valu("v_lshlrev_b32 v11, 2, v8", [11], [8])
            a.valu("v_or_b32 v11, %d, v11" % ii, [11], [11])
        a.valu("v_xor_b32 v11, v9, v11", [11], [9, 11])
        a.valu("v_lshlrev_b32 v11, 4, v11", [11], [11])
        a.valu("v_add_u32 v%d, v10, v11" % (4 + ii), [4 + ii], [10, 11])
    a.salu("s_lshl_b32 s76, s5, 15")
    a.salu("s_lshl_b32 s77, s2, 17")
    s0 = 0 if is_k else 16
    for s in range(s0, s0 + 16):
        a.salu("s_add_u32 s78, s76, %d" % ((s >> 1) * 64 + (s & 1) * 16384))
        a.salu("s_mov_b32 m0, %d" % (XO + s * 1024), swr=["m0"])
        a.ins("dma", "buffer_load_dwordx4 v2, s[%d:%d], s78 offen lds" % (SRD_X, SRD_X + 3), rd=[2], uses_m0=True)

    a.valu("v_lshlrev_b32 v12, 4, v1", [12], [1])
    a.salu("s_lshl_b32 s79, s5, 17")
    a.salu("s_lshl_b32 s78, s4, 10")
    a.salu("s_add_u32 s79, s79, s78")
    for r in range(8):
        rr = r if is_k else r + 8
        a.salu("s_add_u32 s78, s79, %d" % (rr * 8192))
        d = 32 + 4 * r
        a.ins("vld", "buffer_load_dwordx4 v[%d:%d], v12, s[%d:%d], s78 offen" % (d, d + 3, SRD_WQ, SRD_WQ + 3), rd=[12], wr=R(d, 4))

    def wo_prefetch():
        a.salu("s_lshl_b32 s79, s4, 19")
        a.salu("s_lshl_b32 s78, s5, 14")
        a.salu("s_add_u32 s79, s79, s78")
        for r in range(16):
            a.salu("s_add_u32 s78, s79, %d" % (r * 1024))
            d = 64 + 4 * r
            a.ins("vld", "buffer_load_dwordx4 v[%d:%d], v12, s[%d:%d], s78 offen" % (d, d + 3, SRD_WO, SRD_WO + 3), rd=[12], wr=R(d, 4))

    def tile(j):
        slot = j & 3
        for g in range(4):
            a.salu("s_add_u32 s78, s77, %d" % (j * 16384 + g * 4096))
            a.salu("s_mov_b32 m0, %d" % (ring + slot * 16384 + g * 4096), swr=["m0"])
            for ii in range(4):
                off = (" offset:%d" % (ii * 1024)) if ii else ""
                a.ins("dma", "buffer_load_dwordx4 v%d, s[%d:%d], s78 offen%s nt lds" % (4 + ii, sr, sr + 3, off),
                      rd=[4 + ii], uses_m0=True)

    B = a.barrier
    W = a.wait_vm
    if is_k:
        tile(0); tile(1); W(32); B()
        if VAR_A:
            W(16); B()
            tile(2); tile(3); W(32); B()
        else:
            W(32); tile(2); W(32); tile(3); B()
            W(32); B()
        tile(4); W(32); B()
        tile(5); W(32); B()
        tile(6); W(32); B()
        tile(7); W(32); wo_prefetch(); B()
        W(32); B()
        W(16); B()
        W(0)
    else:
        tile(0); tile(1); W(32); B()
        if VAR_A:
            B()
            tile(2); tile(3); W(32); B()
        else:
            W(32); tile(2); W(32); tile(3); B()
            B()
        B()
        W(32); B()
        tile(4); W(32); B()
        tile(5); W(32); B()
        tile(6); W(32); B()
        tile(7); W(32); B()
        W(16); B()
        W(0); B()
    a.raw("s_endpgm")

V_WQOFF = 2
V_WOOFF = 3
V_XO = 5
V_XOW = 14
V_L = 8
V_ALPHA = 9
V_T0, V_T1 = 10, 15
V_M = [6, 12]
V_MC = [7, 11]
V_SUM = [248, 249, 250, 251]
V_ST = 13
KADDR = 16
VADDR = 24
QF = 32
OACC = 64
SBUF = 128
FRAG = 192
LBUF = 128
NST = 3
AFR = 224
BFR = 32

def proj_phase(a, which):
    def perms(s, j):
        buf = LBUF + (s % NST) * 32
        sel = S_SELLO if (j & 1) == 0 else S_SELHI
        q = j >> 1
        for p in range(4):
            lo = buf + (2 * p) * 4 + q
            hi = buf + (2 * p + 1) * 4 + q
            d = AFR + 4 * j + p
            a.valu("v_perm_b32 v%d, v%d, v%d, s%d" % (d, hi, lo, sel), [d], [hi, lo])
    def bread(s):
        for nq in range(2):
            d = BFR + (s & 1) * 8 + 4 * nq
            a.ins("dsr", "ds_read_b128 v[%d:%d], v%d offset:%d" % (d, d + 3, V_XO, (2 * s + nq) * 1024), rd=[V_XO], wr=R(d, 4))
    bread(0)
    bread(1)
    for j in range(8):
        perms(0, j)
    for s in range(16):
        for j in range(8):
            for nq in range(2):
                a.mfma16(OACC + (2 * j + nq) * 4, AFR + 4 * j, BFR + (s & 1) * 8 + 4 * nq, zero=(s == 0))
            if j == 7 and s + 2 < 16:
                bread(s + 2)
            if s + 1 < 16:
                perms(s + 1, j)
            if s + NST < 16:
                proj_load1(a, which, s + NST, j)

def proj_load1(a, which, s, r):
    buf = LBUF + (s % NST) * 32
    d = buf + 4 * r
    if which == 'q':
        a.ins("vld", "buffer_load_dwordx4 v[%d:%d], v%d, s[%d:%d], s%d offen" % (d, d + 3, V_WQOFF, SRD_WQ, SRD_WQ + 3, S_ROW + r),
              rd=[V_WQOFF], wr=R(d, 4))
        a.salu("s_add_u32 s%d, s%d, 0x40000" % (S_ROW + r, S_ROW + r))
    else:
        aa, rr = r >> 2, r & 3
        off = (" offset:%d" % (rr * 1024)) if rr else ""
        a.ins("vld", "buffer_load_dwordx4 v[%d:%d], v%d, s[%d:%d], s%d offen%s" % (d, d + 3, V_WOOFF + aa, SRD_WO, SRD_WO + 3, S_WOOFF, off),
              rd=[V_WOOFF + aa], wr=R(d, 4))
        if r == 7:
            a.salu("s_add_u32 s%d, s%d, 0x8000" % (S_WOOFF, S_WOOFF))

def proj_loads(a, which, s):
    for r in range(8):
        proj_load1(a, which, s, r)

def softmax_items(i):
    it = []
    sb = SBUF + 32 * (i & 1)
    m_old, m_new = V_M[(i + 1) & 1], V_M[i & 1]
    mc_old, mc_new = V_MC[(i + 1) & 1], V_MC[i & 1]
    def add(cost, fn, after=-1):
        it.append((cost, after, fn))
    def v(text, wr, rd, cost=4, after=-1):
        add(cost, lambda a: a.valu(text, wr, rd), after)
    def tr(text, wr, rd):
        add(8, lambda a: a.trans(text, wr, rd))
    tA, tB = V_T0, V_T1
    chains = []
    for (t, base) in ((tA, sb), (tB, sb + 16)):
        c = [("v_max3_f32 v%d, v%d, v%d, v%d" % (t, base, base + 1, base + 2), [t], [base, base + 1, base + 2])]
        for k in range(3, 15, 2):
            c.append(("v_max3_f32 v%d, v%d, v%d, v%d" % (t, t, base + k, base + k + 1), [t], [t, base + k, base + k + 1]))
        chains.append(c)
    for x, y in zip(*chains):
        v(*x); v(*y)
    v("v_max3_f32 v%d, v%d, v%d, v%d" % (tA, tA, sb + 15, sb + 31), [tA], [tA, sb + 15, sb + 31])
    if i > 0:
        v("v_max3_f32 v%d, v%d, v%d, v%d" % (tA, tA, tB, m_old), [tA], [tA, tB, m_old])
    else:
        v("v_max_f32 v%d, v%d, v%d" % (tA, tA, tB), [tA], [tA, tB])
    v("v_mov_b32 v%d, v%d" % (tB, tA), [tB], [tA])
    add(4, lambda a: a.ins("perml", "v_permlane32_swap_b32 v%d, v%d" % (tA, tB), rd=[tA, tB], wr=[tA, tB]))
    v("v_max_f32 v%d, v%d, v%d" % (m_new, tA, tB), [m_new], [tA, tB])
    v("v_mul_f32 v%d, s%d, v%d" % (mc_new, S_C, m_new), [mc_new], [m_new])
    if i > 0:
        v("v_sub_f32 v%d, v%d, v%d" % (V_ALPHA, mc_old, mc_new), [V_ALPHA], [mc_old, mc_new])
        tr("v_exp_f32 v%d, v%d" % (V_ALPHA, V_ALPHA), [V_ALPHA], [V_ALPHA])
    nsum = len(V_SUM)
    started = [False] * nsum
    pend = {}
    for g in range(4):
        b8 = sb + 8 * g
        for k in range(0, 8, 2):
            for kk in (k, k + 1):
                r = b8 + kk
                v("v_fma_f32 v%d, v%d, s%d, -v%d" % (r, r, S_C, mc_new), [r], [r, mc_new])
            for kk in (k, k + 1):
                r = b8 + kk
                tr("v_exp_f32 v%d, v%d" % (r, r), [r], [r])
        for k in range(8):
            r = b8 + k
            si = k % nsum
            sr = V_SUM[si]
            if not started[si]:
                if si not in pend:
                    pend[si] = r
                else:
                    r0 = pend.pop(si)
                    v("v_add_f32 v%d, v%d, v%d" % (sr, r0, r), [sr], [r0, r])
                    started[si] = True
            else:
                v("v_add_f32 v%d, v%d, v%d" % (sr, sr, r), [sr], [sr, r])
        assert not pend or g == 0
        if g == 0:
            assert not pend, pend
        for p in range(4):
            d = b8 + p
            v("v_cvt_pk_bf16_f32 v%d, v%d, v%d" % (d, b8 + 2 * p, b8 + 2 * p + 1), [d], [b8 + 2 * p, b8 + 2 * p + 1])
    v("v_add_f32 v%d, v%d, v%d" % (V_SUM[0], V_SUM[0], V_SUM[1]), [V_SUM[0]], [V_SUM[0], V_SUM[1]])
    v("v_add_f32 v%d, v%d, v%d" % (V_SUM[2], V_SUM[2], V_SUM[3]), [V_SUM[2]], [V_SUM[2], V_SUM[3]])
    if i > 0:
        v("v_fma_f32 v%d, v%d, v%d, v%d" % (V_L, V_L, V_ALPHA, V_SUM[0]), [V_L], [V_L, V_ALPHA, V_SUM[0]])
        v("v_add_f32 v%d, v%d, v%d" % (V_L, V_L, V_SUM[2]), [V_L], [V_L, V_SUM[2]])
        for r in range(OACC, OACC + 64):
            v("v_mul_f32 v%d, v%d, v%d" % (r, r, V_ALPHA), [r], [r, V_ALPHA], after=17)
    else:
        v("v_add_f32 v%d, v%d, v%d" % (V_L, V_SUM[0], V_SUM[2]), [V_L], [V_SUM[0], V_SUM[2]])
    return it

frag_ctr = [0]

def iter_items(i):
    M = []
    if 1 <= i <= 8:
        j = i - 1
        slot = j & 3
        pb = SBUF + 32 * (j & 1)
        for t in range(4):
            for u in range(4):
                f = FRAG + 4 * (frag_ctr[0] % 8); frag_ctr[0] += 1
                def ld(a, f=f, u=u, t=t, slot=slot):
                    for aa in range(2):
                        va = VADDR + 2 * u + aa
                        a.ins("dsr", "ds_read_b64_tr_b16 v[%d:%d], v%d offset:%d" % (f + 2 * aa, f + 2 * aa + 1, va, slot * 16384 + t * 4096 + aa * 2048),
                              rd=[va], wr=[f + 2 * aa, f + 2 * aa + 1])
                pf = pb + 16 * (t >> 1) + 8 * (t & 1)
                def mm(a, f=f, u=u, pf=pf, z=(j == 0 and t == 0)):
                    a.mfma(OACC + 16 * u, f, pf, zero=z)
                M.append((ld, mm, 8))
    if -1 <= i <= 6:
        j = i + 1
        slot = j & 3
        sb = SBUF + 32 * (j & 1)
        for tt in range(2):
            for ez in range(8):
                f = FRAG + 4 * (frag_ctr[0] % 8); frag_ctr[0] += 1
                def ld(a, f=f, ez=ez, tt=tt, slot=slot):
                    ka = KADDR + ez
                    a.ins("dsr", "ds_read_b128 v[%d:%d], v%d offset:%d" % (f, f + 3, ka, slot * 16384 + tt * 8192),
                          rd=[ka], wr=R(f, 4))
                def mm(a, f=f, ez=ez, tt=tt, sb=sb):
                    a.mfma(sb + 16 * tt, f, QF + 4 * ez, zero=(ez == 0))
                M.append((ld, mm, 4))
    return M

DPRE = 5

def run_iter(a, i):
    M = iter_items(i)
    V = softmax_items(i) if 0 <= i <= 7 else []
    a.comment("---- iteration %d" % i)
    for n in range(min(DPRE, len(M))):
        M[n][0](a)
    vi = 0
    cum = 0
    head = 110 if V else 0
    tot = sum(x[0] for x in V)
    while vi < len(V) and cum + V[vi][0] <= head and V[vi][1] < 0:
        V[vi][2](a); cum += V[vi][0]; vi += 1
    nM = len(M)
    rest = tot - cum
    base = cum
    for n in range(nM):
        M[n][1](a)
        if n + DPRE < nM:
            M[n + DPRE][0](a)
        target = base + rest * (n + 1) / nM
        while vi < len(V) and cum + V[vi][0] / 2 <= target and V[vi][1] <= n:
            V[vi][2](a); cum += V[vi][0]; vi += 1
    while vi < len(V):
        V[vi][2](a); vi += 1

def consumer(a):
    a.valu("v_and_b32 v16, 31, v1", [16], [1])
    a.valu("v_lshrrev_b32 v17, 5, v1", [17], [1])
    a.salu("s_lshl_b32 s76, s4, 2")
    a.salu("s_add_u32 s76, s76, s3")
    a.salu("s_lshl_b32 s76, s76, 8")
    a.valu("v_lshrrev_b32 v19, 4, v1", [19], [1])
    a.valu("v_lshlrev_b32 v2, 16, v19", [2], [19])
    a.valu("v_and_b32 v18, 15, v1", [18], [1])
    a.valu("v_lshlrev_b32 v18, 4, v18", [18], [18])
    a.valu("v_add_u32 v2, v2, v18", [2], [2, 18])
    a.valu("v_add_u32 v2, s76, v2", [2], [2])
    for r in range(8):
        a.salu("s_mov_b32 s%d, %d" % (S_ROW + r, r * 8192))
    a.salu("s_lshl_b32 s76, s3, 8")
    a.valu("v_lshlrev_b32 v3, 14, v17", [3], [17])
    a.valu("v_and_b32 v20, 1, v19", [20], [19])
    a.valu("v_lshlrev_b32 v20, 12, v20", [20], [20])
    a.valu("v_add_u32 v3, v3, v20", [3], [3, 20])
    a.valu("v_add_u32 v3, v3, v18", [3], [3, 18])
    a.valu("v_add_u32 v3, s76, v3", [3], [3])
    a.valu("v_add_u32 v4, 0x2000, v3", [4], [3])
    a.salu("s_lshl_b32 s%d, s4, 19" % S_WOOFF)
    a.valu("v_lshlrev_b32 v13, 4, v1", [13], [1])
    a.valu("v_add_u32 v5, 0x%x, v13" % XO, [5], [13])
    a.salu("s_lshl_b32 s76, s3, 13")
    a.salu("s_add_u32 s76, s76, 0x%x" % XO)
    a.valu("v_lshrrev_b32 v20, 4, v16", [20], [16])
    a.valu("v_lshlrev_b32 v20, 10, v20", [20], [20])
    a.valu("v_lshlrev_b32 v21, 8, v17", [21], [17])
    a.valu("v_add_u32 v20, v20, v21", [20], [20, 21])
    a.valu("v_add_u32 v20, v20, v18", [20], [20, 18])
    a.valu("v_add_u32 v14, s76, v20", [14], [20])
    a.salu("s_lshl_b32 s76, s2, 2")
    a.salu("s_add_u32 s76, s76, s3")
    a.salu("s_lshl_b32 s76, s76, 14")
    for j in range(4):
        a.salu("s_add_u32 s%d, s76, %d" % (S_ST + j, j * 4096))
    a.valu("v_lshrrev_b32 v18, 4, v1", [18], [1])
    a.valu("v_and_b32 v18, 1, v18", [18], [18])
    a.valu("v_lshrrev_b32 v19, 2, v1", [19], [1])
    a.valu("v_and_b32 v19, 3, v19", [19], [19])
    a.valu("v_and_b32 v20, 3, v1", [20], [1])
    a.valu("v_lshrrev_b32 v21, 1, v20", [21], [20])
    a.valu("v_xor_b32 v21, v21, v17", [21], [21, 17])
    a.valu("v_lshlrev_b32 v22, 2, v19", [22], [19])
    a.valu("v_or_b32 v21, v21, v22", [21], [21, 22])
    a.valu("v_lshlrev_b32 v22, 1, v18", [22], [18])
    a.valu("v_or_b32 v21, v21, v22", [21], [21, 22])
    a.valu("v_lshlrev_b32 v21, 4, v21", [21], [21])
    a.valu("v_and_b32 v20, 1, v20", [20], [20])
    a.valu("v_lshlrev_b32 v20, 3, v20", [20], [20])
    a.valu("v_or_b32 v21, v21, v20", [21], [21, 20])
    a.valu("v_lshlrev_b32 v22, 2, v17", [22], [17])
    a.valu("v_add_u32 v22, v22, v19", [22], [22, 19])
    a.valu("v_lshlrev_b32 v22, 8, v22", [22], [22])
    a.valu("v_add_u32 v21, v21, v22", [21], [21, 22])
    a.valu("v_add_u32 v21, 0x%x, v21" % VRING, [21], [21])
    for u in range(4):
        for aa in range(2):
            d = VADDR + 2 * u + aa
            a.valu("v_xor_b32 v%d, 0x%x, v21" % (d, (4 * u + 2 * aa) << 4), [d], [21])
    a.valu("v_and_b32 v18, 15, v16", [18], [16])
    a.valu("v_lshlrev_b32 v19, 3, v17", [19], [17])
    a.valu("v_xor_b32 v18, v18, v19", [18], [18, 19])
    a.valu("v_lshlrev_b32 v18, 4, v18", [18], [18])
    a.valu("v_lshlrev_b32 v19, 8, v16", [19], [16])
    a.valu("v_add_u32 v15, v18, v19", [15], [18, 19])
    for e in range(8):
        d = KADDR + e
        a.valu("v_xor_b32 v%d, 0x%x, v15" % (d, e << 4), [d], [15])
    stamp(a)
    a.barrier()
    stamp(a)
    for s in range(NST):
        proj_loads(a, 'q', s)
    proj_phase(a, 'q')
    for i in range(4):
        for nq in range(2):
            for p in range(4):
                t0 = OACC + (2 * (2 * p) + nq) * 4 + i
                t1 = OACC + (2 * (2 * p + 1) + nq) * 4 + i
                d = QF + 4 * (4 * nq + i) + p
                a.valu("v_cvt_pk_bf16_f32 v%d, v%d, v%d" % (d, t0, t1), [d], [t0, t1])
    for i in range(4):
        for p in range(4):
            da = QF + 4 * i + p
            db = QF + 4 * (4 + i) + p
            a.ins("perml", "v_permlane16_swap_b32 v%d, v%d" % (da, db), rd=[da, db], wr=[da, db])
    stamp(a)
    for i in range(-1, 9):
        a.wait_lg(0)
        a.barrier()
        if i in (-1, 1, 3, 5, 7, 8):
            stamp(a)
        run_iter(a, i)
    for s in range(NST):
        proj_loads(a, 'o', s)
    a.valu("v_mov_b32 v%d, v%d" % (V_T1, V_L), [V_T1], [V_L])
    a.ins("perml", "v_permlane32_swap_b32 v%d, v%d" % (V_L, V_T1), rd=[V_L, V_T1], wr=[V_L, V_T1])
    a.valu("v_add_f32 v%d, v%d, v%d" % (V_L, V_L, V_T1), [V_L], [V_L, V_T1])
    a.trans("v_rcp_f32 v%d, v%d" % (V_L, V_L), [V_L], [V_L])
    for u in range(4):
        for t in range(2):
            for p in range(4):
                r0 = OACC + 16 * u + 8 * t + 2 * p
                a.valu("v_mul_f32 v%d, v%d, v%d" % (r0, r0, V_L), [r0], [r0, V_L])
                a.valu("v_mul_f32 v%d, v%d, v%d" % (r0 + 1, r0 + 1, V_L), [r0 + 1], [r0 + 1, V_L])
            for p in range(4):
                r0 = OACC + 16 * u + 8 * t + 2 * p
                d = QF + 4 * (2 * u + t) + p
                a.valu("v_cvt_pk_bf16_f32 v%d, v%d, v%d" % (d, r0, r0 + 1), [d], [r0, r0 + 1])
            d = QF + 4 * (2 * u + t)
            a.ins("dsw", "ds_write_b128 v%d, v[%d:%d] offset:%d" % (V_XOW, d, d + 3, u * 2048 + t * 512), rd=[V_XOW] + R(d, 4))
    a.wait_lg(0)
    a.barrier()
    stamp(a)
    proj_phase(a, 'o')
    for j in range(4):
        for g in range(4):
            d = OACC + (4 * j + g) * 4
            off = (" offset:%d" % (g * 1024)) if g else ""
            a.ins("vst", "buffer_store_dwordx4 v[%d:%d], v%d, s[%d:%d], s%d offen%s" % (d, d + 3, V_ST, SRD_WS, SRD_WS + 3, S_ST + j, off),
                  rd=[V_ST] + R(d, 4), wide_store=True)
    stamp(a)
    stamp_flush(a)
    a.raw("s_endpgm")

def kernel1():
    out = []
    a = Asm()
    a.label(K1)
    a.raw("s_cmp_ge_u32 s2, 256")
    a.raw("s_cbranch_scc1 L_k1_end")
    a.raw("s_load_dwordx16 s[16:31], s[0:1], 0")
    a.valu("v_and_b32 v1, 63, v0", [1], [0])
    a.valu("v_lshrrev_b32 v2, 6, v0", [2], [0])
    a.ins("rfl", "v_readfirstlane_b32 s3, v2", rd=[2], swr=["s3"])
    a.salu("s_and_b32 s4, s2, 7")
    a.salu("s_lshr_b32 s5, s2, 3")
    a.salu("s_mov_b32 s%d, 0x05040100" % S_SELLO)
    a.salu("s_mov_b32 s%d, 0x07060302" % S_SELHI)
    a.salu("s_mov_b32 s%d, 0x%08x" % (S_C, f32bits(CSCALE)))
    a.raw("s_waitcnt lgkmcnt(0)")
    srd(a, 16, SRD_X, 0x100000)
    srd(a, 18, SRD_K, 0x2000000)
    srd(a, 20, SRD_V, 0x2000000)
    srd(a, 22, SRD_WQ, 0x400000)
    srd(a, 24, SRD_WO, 0x400000)
    srd(a, 30, SRD_WS, 0x1010000 if PROF else 0x1000000)
    a.raw("s_nop 4")
    a.raw("s_cmp_eq_u32 s3, 4")
    a.raw("s_cbranch_scc1 L_kprod")
    a.raw("s_cmp_eq_u32 s3, 5")
    a.raw("s_cbranch_scc1 L_vprod")
    out.append(a.text())
    c = Asm(); consumer(c); out.append(c.text())
    sys.stderr.write("consumer: %d slots, %d nop states\n" % (c.slot, c.nops))
    p = Asm(); p.label("L_kprod"); producer(p, True); out.append(p.text())
    p = Asm(); p.label("L_vprod"); producer(p, False); out.append(p.text())
    out.append("L_k1_end:\n    s_endpgm\n")
    return "".join(out)

def kernel2():
    a = Asm()
    a.label(K2)
    a.raw("s_cmp_ge_u32 s2, 256")
    a.raw("s_cbranch_scc1 L_k2_end")
    a.raw("s_load_dwordx2 s[16:17], s[0:1], 40")
    a.raw("s_load_dwordx2 s[18:19], s[0:1], 56")
    a.valu("v_and_b32 v1, 63, v0", [1], [0])
    a.valu("v_lshrrev_b32 v2, 6, v0", [2], [0])
    a.ins("rfl", "v_readfirstlane_b32 s3, v2", rd=[2], swr=["s3"])
    a.salu("s_lshr_b32 s5, s2, 3")
    a.salu("s_lshr_b32 s6, s2, 1")
    a.salu("s_and_b32 s6, s6, 3")
    a.salu("s_and_b32 s7, s2, 1")
    a.valu("v_lshlrev_b32 v3, 4, v1", [3], [1])
    a.valu("v_add_u32 v4, 0x1000, v3", [4], [3])
    a.valu("v_add_u32 v5, 0x2000, v3", [5], [3])
    a.valu("v_add_u32 v6, 0x3000, v3", [6], [3])
    a.salu("s_lshl_b32 s8, s5, 19")
    a.salu("s_lshl_b32 s9, s6, 14")
    a.salu("s_add_u32 s8, s8, s9")
    a.salu("s_lshl_b32 s9, s7, 10")
    a.salu("s_add_u32 s8, s8, s9")
    a.salu("s_lshl_b32 s9, s3, 17")
    a.salu("s_add_u32 s8, s8, s9")
    a.salu("s_add_u32 s9, s8, 0x10000")
    a.valu("v_and_b32 v8, 15, v1", [8], [1])
    a.valu("v_lshlrev_b32 v8, 10, v8", [8], [8])
    a.valu("v_lshrrev_b32 v9, 4, v1", [9], [1])
    a.valu("v_lshlrev_b32 v9, 6, v9", [9], [9])
    a.valu("v_add_u32 v8, v8, v9", [8], [8, 9])
    a.salu("s_lshl_b32 s10, s5, 15")
    a.salu("s_lshl_b32 s11, s6, 8")
    a.salu("s_add_u32 s10, s10, s11")
    a.salu("s_lshl_b32 s11, s7, 14")
    a.salu("s_add_u32 s10, s10, s11")
    a.salu("s_lshl_b32 s12, s3, 13")
    a.salu("s_sub_u32 s12, s12, 0x2000")
    a.valu("v_add_u32 v10, s12, v3", [10], [3])
    a.raw("s_waitcnt lgkmcnt(0)")
    srd(a, 16, 20, 0x100000)
    srd(a, 18, 24, 0x1000000)
    base = 16
    for hk in range(2):
        for j in range(8):
            d = base + (hk * 8 + j) * 4
            off = " offset:2048" if (j & 1) else ""
            a.ins("vld", "buffer_load_dwordx4 v[%d:%d], v%d, s[24:27], s%d offen%s" % (d, d + 3, 3 + (j >> 1), 8 + hk, off), rd=[3 + (j >> 1)], wr=R(d, 4))
    for k in range(32):
        a.valu("v_add_f32 v%d, v%d, v%d" % (base + k, base + k, base + 32 + k), [base + k], [base + k, base + 32 + k])
    a.raw("s_cmp_eq_u32 s3, 0")
    a.raw("s_cbranch_scc1 L_k2_w0")
    b = Asm(); b.slot = 1000
    for j in range(8):
        d = base + 4 * j
        b.ins("dsw", "ds_write_b128 v10, v[%d:%d] offset:%d" % (d, d + 3, j * 1024), rd=[10] + R(d, 4))
    b.wait_lg(0)
    b.barrier()
    b.raw("s_endpgm")
    c = Asm(); c.label("L_k2_w0")
    c.barrier()
    for v in range(3):
        for j in range(8):
            d = 64 + (v * 8 + j) * 4
            c.ins("dsr", "ds_read_b128 v[%d:%d], v3 offset:%d" % (d, d + 3, v * 8192 + j * 1024), rd=[3], wr=R(d, 4))
    for v in range(3):
        for k in range(32):
            c.valu("v_add_f32 v%d, v%d, v%d" % (base + k, base + k, 64 + v * 32 + k), [base + k], [base + k, 64 + v * 32 + k])
    o = 160
    for i in range(4):
        for pr in range(4):
            d = o + 4 * i + pr
            x0 = base + (2 * pr) * 4 + i
            x1 = base + (2 * pr + 1) * 4 + i
            c.valu("v_cvt_pk_bf16_f32 v%d, v%d, v%d" % (d, x0, x1), [d], [x0, x1])
    for i in range(4):
        off = (" offset:%d" % (16 * i)) if i else ""
        c.ins("vst", "buffer_store_dwordx4 v[%d:%d], v8, s[20:23], s10 offen%s" % (o + 4 * i, o + 4 * i + 3, off), rd=[8] + R(o + 4 * i, 4), wide_store=True)
    c.label("L_k2_end")
    c.raw("s_endpgm")
    return a.text() + b.text() + c.text()

def desc(name, nv, ns=102):
    return """.amdhsa_kernel %s
  .amdhsa_next_free_vgpr %d
  .amdhsa_next_free_sgpr %d
  .amdhsa_accum_offset %d
  .amdhsa_group_segment_fixed_size 0
  .amdhsa_kernarg_size 64
  .amdhsa_user_sgpr_count 2
  .amdhsa_user_sgpr_kernarg_segment_ptr 1
  .amdhsa_system_sgpr_workgroup_id_x 1
.end_amdhsa_kernel
""" % (name, nv, ns, nv)

def main(path):
    hdr = """; Kernarg layout for this problem (64 bytes, ptrs only, base s[0:1]):
;   offset   0: x   8: k_cache  16: v_cache  24: wq  32: wo  40: d_out  48: d_debug  56: d_ws
; @launch kernel=%s grid=(256,1,1) block=(384,1,1) lds=%d
; @launch kernel=%s grid=(256,1,1) block=(256,1,1) lds=24576
.amdgcn_target "amdgcn-amd-amdhsa--gfx950"
.text
""" % (K1, LDS_BYTES, K2)
    s = hdr
    for nm, body in ((K1, kernel1()), (K2, kernel2())):
        s += ".globl %s\n.p2align 8\n.type %s,@function\n" % (nm, nm) + body
    s += '.section .rodata,"a"\n.p2align 6\n' + desc(K1, 256) + ".p2align 6\n" + desc(K2, 192)
    open(path, "w").write(s)

if __name__ == "__main__":
    main(sys.argv[1] if len(sys.argv) > 1 else "cdna_kernels/%s.s" % NAME)
```

```python
import sys, struct, math
sys.path.insert(0, "work")
from asmlib import Asm, R

NAME = "standalone__gqa_block_cached__near_ridge"
K1 = NAME + "_kernel"
K2 = "reduce_kernel"

KRING = 0
VRING = 65536
XO = 131072
LDS_BYTES = 163840

SRD_X, SRD_K, SRD_V, SRD_WQ, SRD_WO, SRD_WS = 32, 36, 40, 44, 48, 52
S_SELLO, S_SELHI, S_C = 56, 57, 58
S_ROW = 60
S_WOOFF = 68
S_ST = 70
S_T0 = 76
S_TAU = 59
S_FLAG = 74
TAU = 8.0

def f32bits(x):
    return struct.unpack("<I", struct.pack("<f", x))[0]

CSCALE = (128.0 ** -0.5) * math.log2(math.e)
import os
PROF = int(os.environ.get("PROF", "0"))
VAR_A = int(os.environ.get("VAR_A", "0"))
EARLYQ = int(os.environ.get("EARLYQ", "0"))
PPRIO = int(os.environ.get("PPRIO", "0"))
_stamp = [0]
def stamp(a):
    if not PROF:
        return
    k = _stamp[0]; _stamp[0] += 1
    assert k < 8
    a.raw("s_memrealtime s[%d:%d]" % (80 + 2 * k, 81 + 2 * k))
def stamp_flush(a):
    if not PROF:
        return
    a.raw("s_cmp_lg_u32 s3, 0")
    a.raw("s_cbranch_scc1 L_noflush")
    a.raw("s_waitcnt vmcnt(0)")
    a.raw("s_memrealtime s[98:99]")
    a.raw("s_waitcnt lgkmcnt(0)")
    a.salu("s_lshl_b32 s76, s2, 8")
    a.salu("s_add_u32 s76, s76, 0x1000000")
    a.valu("v_mov_b32 v253, 0", [253], [])
    for k in list(range(_stamp[0])) + [8, 9]:
        a.valu("v_mov_b32 v252, s%d" % (80 + 2 * k), [252], [])
        a.ins("vst", "buffer_store_dword v252, v253, s[%d:%d], s76 offen offset:%d" % (SRD_WS, SRD_WS + 3, 4 * k), rd=[252, 253])
        a.raw("s_waitcnt vmcnt(0)")
    a.label("L_noflush")

def srd(a, base_lo, dst, size):
    a.salu("s_mov_b32 s%d, s%d" % (dst, base_lo))
    a.salu("s_and_b32 s%d, s%d, 0xffff" % (dst + 1, base_lo + 1))
    a.salu("s_mov_b32 s%d, 0x%x" % (dst + 2, size))
    a.salu("s_mov_b32 s%d, 0x00020000" % (dst + 3))

def producer(a, is_k):
    ring = KRING if is_k else VRING
    if PPRIO:
        a.raw("s_setprio %d" % PPRIO)
    sr = SRD_K if is_k else SRD_V
    a.valu("v_and_b32 v3, 15, v1", [3], [1])
    a.valu("v_lshlrev_b32 v2, 10, v3", [2], [3])
    a.valu("v_lshrrev_b32 v3, 4, v1", [3], [1])
    a.valu("v_lshlrev_b32 v3, 4, v3", [3], [3])
    a.valu("v_add_u32 v2, v2, v3", [2], [2, 3])
    a.valu("v_lshrrev_b32 v8, 4, v1", [8], [1])
    a.valu("v_and_b32 v9, 15, v1", [9], [1])
    a.valu("v_lshlrev_b32 v10, 8, v8", [10], [8])
    for ii in range(4):
        if is_k:
            a.valu("v_add_u32 v11, %d, v8" % (4 * ii), [11], [8])
        else:
            a.valu("v_lshlrev_b32 v11, 2, v8", [11], [8])
            a.valu("v_or_b32 v11, %d, v11" % ii, [11], [11])
        a.valu("v_xor_b32 v11, v9, v11", [11], [9, 11])
        a.valu("v_lshlrev_b32 v11, 4, v11", [11], [11])
        a.valu("v_add_u32 v%d, v10, v11" % (4 + ii), [4 + ii], [10, 11])
    a.salu("s_lshl_b32 s76, s5, 15")
    a.salu("s_lshl_b32 s77, s2, 17")
    s0 = 0 if is_k else 16
    for s in range(s0, s0 + 16):
        a.salu("s_add_u32 s78, s76, %d" % ((s >> 1) * 64 + (s & 1) * 16384))
        a.salu("s_mov_b32 m0, %d" % (XO + s * 1024), swr=["m0"])
        a.ins("dma", "buffer_load_dwordx4 v2, s[%d:%d], s78 offen lds" % (SRD_X, SRD_X + 3), rd=[2], uses_m0=True)

    a.valu("v_lshlrev_b32 v12, 4, v1", [12], [1])
    a.salu("s_lshl_b32 s79, s5, 17")
    a.salu("s_lshl_b32 s78, s4, 10")
    a.salu("s_add_u32 s79, s79, s78")
    for r in range(8):
        rr = r if is_k else r + 8
        a.salu("s_add_u32 s78, s79, %d" % (rr * 8192))
        d = 32 + 4 * r
        a.ins("vld", "buffer_load_dwordx4 v[%d:%d], v12, s[%d:%d], s78 offen" % (d, d + 3, SRD_WQ, SRD_WQ + 3), rd=[12], wr=R(d, 4))

    def wo_prefetch():
        a.salu("s_lshl_b32 s79, s4, 19")
        a.salu("s_lshl_b32 s78, s5, 14")
        a.salu("s_add_u32 s79, s79, s78")
        for r in range(16):
            a.salu("s_add_u32 s78, s79, %d" % (r * 1024))
            d = 64 + 4 * r
            a.ins("vld", "buffer_load_dwordx4 v[%d:%d], v12, s[%d:%d], s78 offen" % (d, d + 3, SRD_WO, SRD_WO + 3), rd=[12], wr=R(d, 4))

    def tile(j):
        slot = j & 3
        for g in range(4):
            a.salu("s_add_u32 s78, s77, %d" % (j * 16384 + g * 4096))
            a.salu("s_mov_b32 m0, %d" % (ring + slot * 16384 + g * 4096), swr=["m0"])
            for ii in range(4):
                off = (" offset:%d" % (ii * 1024)) if ii else ""
                a.ins("dma", "buffer_load_dwordx4 v%d, s[%d:%d], s78 offen%s nt lds" % (4 + ii, sr, sr + 3, off),
                      rd=[4 + ii], uses_m0=True)

    pst = [0]
    def B():
        if PROF and pst[0] < 8:
            k = pst[0]; pst[0] += 1
            a.raw("s_memrealtime s[%d:%d]" % (80 + 2 * k, 81 + 2 * k))
        a.barrier()
    W = a.wait_vm
    if is_k:
        tile(0); tile(1); W(32); B()
        tile(2); W(32); tile(3); W(32); B()
        W(16); B()
        tile(4); W(16); B()
        tile(5); W(16); B()
        tile(6); W(16); B()
        tile(7); W(16); wo_prefetch(); B()
        W(16); B()
        W(0)
    else:
        tile(0); tile(1); W(32); B()
        tile(2); W(32); tile(3); B()
        B()
        W(32); B()
        W(16); B()
        tile(4); W(16); B()
        tile(5); W(16); B()
        tile(6); W(16); B()
        tile(7); W(16); B()
        W(0); B()
    if PROF:
        a.raw("s_waitcnt lgkmcnt(0)")
        a.salu("s_lshl_b32 s76, s2, 8")
        a.salu("s_add_u32 s76, s76, 0x1000000")
        a.valu("v_mov_b32 v253, 0", [253], [])
        for k in range(8):
            a.valu("v_mov_b32 v252, s%d" % (80 + 2 * k), [252], [])
            a.ins("vst", "buffer_store_dword v252, v253, s[%d:%d], s76 offen offset:%d" % (SRD_WS, SRD_WS + 3, (64 if is_k else 128) + 4 * k), rd=[252, 253])
            a.raw("s_waitcnt vmcnt(0)")
    a.raw("s_endpgm")

V_WQOFF = 2
V_WOOFF = 3
V_XO = 5
V_XOW = 14
V_L = 8
V_ALPHA = 9
V_T0, V_T1 = 10, 15
V_M = [6, 12]
V_MC = [7, 11]
V_SUM = [248, 249, 250, 251]
V_ST = 13
KADDR = 16
VADDR = 24
QF = 32
OACC = 64
SBUF = 128
FRAG = 192
LBUF = 128
NST = 3
AFR = 224
BFR = 32

def proj_phase(a, which):
    def perms(s, j):
        buf = LBUF + (s % NST) * 32
        sel = S_SELLO if (j & 1) == 0 else S_SELHI
        q = j >> 1
        for p in range(4):
            lo = buf + (2 * p) * 4 + q
            hi = buf + (2 * p + 1) * 4 + q
            d = AFR + 4 * j + p
            a.valu("v_perm_b32 v%d, v%d, v%d, s%d" % (d, hi, lo, sel), [d], [hi, lo])
    def bread(s):
        for nq in range(2):
            d = BFR + (s & 1) * 8 + 4 * nq
            a.ins("dsr", "ds_read_b128 v[%d:%d], v%d offset:%d" % (d, d + 3, V_XO, (2 * s + nq) * 1024), rd=[V_XO], wr=R(d, 4))
    bread(0)
    bread(1)
    for j in range(8):
        perms(0, j)
    for s in range(16):
        for j in range(8):
            for nq in range(2):
                a.mfma16(OACC + (2 * j + nq) * 4, AFR + 4 * j, BFR + (s & 1) * 8 + 4 * nq, zero=(s == 0))
            if j == 7 and s + 2 < 16:
                bread(s + 2)
            if s + 1 < 16:
                perms(s + 1, j)
            if s + NST < 16:
                proj_load1(a, which, s + NST, j)

def proj_load1(a, which, s, r):
    buf = LBUF + (s % NST) * 32
    d = buf + 4 * r
    if which == 'q':
        a.ins("vld", "buffer_load_dwordx4 v[%d:%d], v%d, s[%d:%d], s%d offen" % (d, d + 3, V_WQOFF, SRD_WQ, SRD_WQ + 3, S_ROW + r),
              rd=[V_WQOFF], wr=R(d, 4))
        a.salu("s_add_u32 s%d, s%d, 0x40000" % (S_ROW + r, S_ROW + r))
    else:
        aa, rr = r >> 2, r & 3
        off = (" offset:%d" % (rr * 1024)) if rr else ""
        a.ins("vld", "buffer_load_dwordx4 v[%d:%d], v%d, s[%d:%d], s%d offen%s" % (d, d + 3, V_WOOFF + aa, SRD_WO, SRD_WO + 3, S_WOOFF, off),
              rd=[V_WOOFF + aa], wr=R(d, 4))
        if r == 7:
            a.salu("s_add_u32 s%d, s%d, 0x8000" % (S_WOOFF, S_WOOFF))

def proj_loads(a, which, s):
    for r in range(8):
        proj_load1(a, which, s, r)

def softmax_items(i):
    it = []
    sb = SBUF + 32 * (i & 1)
    m_old, m_new = V_M[(i + 1) & 1], V_M[i & 1]
    mc_old, mc_new = V_MC[(i + 1) & 1], V_MC[i & 1]
    def add(cost, fn, after=-1):
        it.append((cost, after, fn))
    def v(text, wr, rd, cost=4, after=-1):
        add(cost, lambda a: a.valu(text, wr, rd), after)
    def tr(text, wr, rd):
        add(8, lambda a: a.trans(text, wr, rd))
    tA, tB = V_T0, V_T1
    chains = []
    for (t, base) in ((tA, sb), (tB, sb + 16)):
        c = [("v_max3_f32 v%d, v%d, v%d, v%d" % (t, base, base + 1, base + 2), [t], [base, base + 1, base + 2])]
        for k in range(3, 15, 2):
            c.append(("v_max3_f32 v%d, v%d, v%d, v%d" % (t, t, base + k, base + k + 1), [t], [t, base + k, base + k + 1]))
        chains.append(c)
    for x, y in zip(*chains):
        v(*x); v(*y)
    v("v_max3_f32 v%d, v%d, v%d, v%d" % (tA, tA, sb + 15, sb + 31), [tA], [tA, sb + 15, sb + 31])
    v("v_max_f32 v%d, v%d, v%d" % (tA, tA, tB), [tA], [tA, tB])
    v("v_mov_b32 v%d, v%d" % (tB, tA), [tB], [tA])
    add(4, lambda a: a.ins("perml", "v_permlane32_swap_b32 v%d, v%d" % (tA, tB), rd=[tA, tB], wr=[tA, tB]))
    if i == 0:
        v("v_max_f32 v%d, v%d, v%d" % (m_new, tA, tB), [m_new], [tA, tB])
        v("v_mul_f32 v%d, s%d, v%d" % (mc_new, S_C, m_new), [mc_new], [m_new])
    else:
        v("v_max_f32 v%d, v%d, v%d" % (tA, tA, tB), [tA], [tA, tB])
        v("v_mul_f32 v%d, s%d, v%d" % (tA, S_C, tA), [tA], [tA])
        v("v_sub_f32 v%d, v%d, v%d" % (tB, tA, mc_old), [tB], [tA, mc_old])
        add(4, lambda a: a.ins("valu", "v_cmp_lt_f32 vcc, s%d, v%d" % (S_TAU, tB), rd=[tB], swr=["vcc"]))
        add(4, lambda a: a.ins("valu", "v_cndmask_b32 v%d, v%d, v%d, vcc" % (mc_new, mc_old, tA), rd=[mc_old, tA], wr=[mc_new], srd=["vcc"]))
        add(4, lambda a: a.salu("s_mov_b64 s[%d:%d], vcc" % (S_FLAG, S_FLAG + 1)))
        v("v_sub_f32 v%d, v%d, v%d" % (V_ALPHA, mc_old, mc_new), [V_ALPHA], [mc_old, mc_new])
        tr("v_exp_f32 v%d, v%d" % (V_ALPHA, V_ALPHA), [V_ALPHA], [V_ALPHA])
    nsum = len(V_SUM)
    started = [False] * nsum
    pend = {}
    for g in range(4):
        b8 = sb + 8 * g
        for k in range(0, 8, 2):
            for kk in (k, k + 1):
                r = b8 + kk
                v("v_fma_f32 v%d, v%d, s%d, -v%d" % (r, r, S_C, mc_new), [r], [r, mc_new])
            for kk in (k, k + 1):
                r = b8 + kk
                tr("v_exp_f32 v%d, v%d" % (r, r), [r], [r])
        for k in range(8):
            r = b8 + k
            si = k % nsum
            sr = V_SUM[si]
            if not started[si]:
                if si not in pend:
                    pend[si] = r
                else:
                    r0 = pend.pop(si)
                    v("v_add_f32 v%d, v%d, v%d" % (sr, r0, r), [sr], [r0, r])
                    started[si] = True
            else:
                v("v_add_f32 v%d, v%d, v%d" % (sr, sr, r), [sr], [sr, r])
        assert not pend or g == 0
        if g == 0:
            assert not pend, pend
        for p in range(4):
            d = b8 + p
            v("v_cvt_pk_bf16_f32 v%d, v%d, v%d" % (d, b8 + 2 * p, b8 + 2 * p + 1), [d], [b8 + 2 * p, b8 + 2 * p + 1])
    v("v_add_f32 v%d, v%d, v%d" % (V_SUM[0], V_SUM[0], V_SUM[1]), [V_SUM[0]], [V_SUM[0], V_SUM[1]])
    v("v_add_f32 v%d, v%d, v%d" % (V_SUM[2], V_SUM[2], V_SUM[3]), [V_SUM[2]], [V_SUM[2], V_SUM[3]])
    if i > 0:
        v("v_fma_f32 v%d, v%d, v%d, v%d" % (V_L, V_L, V_ALPHA, V_SUM[0]), [V_L], [V_L, V_ALPHA, V_SUM[0]])
        v("v_add_f32 v%d, v%d, v%d" % (V_L, V_L, V_SUM[2]), [V_L], [V_L, V_SUM[2]])
    else:
        v("v_add_f32 v%d, v%d, v%d" % (V_L, V_SUM[0], V_SUM[2]), [V_L], [V_SUM[0], V_SUM[2]])
    return it

frag_ctr = [0]

def iter_items(i):
    M = []
    if 1 <= i <= 8:
        j = i - 1
        slot = j & 3
        pb = SBUF + 32 * (j & 1)
        for t in range(4):
            for u in range(4):
                f = FRAG + 4 * (frag_ctr[0] % 8); frag_ctr[0] += 1
                def ld(a, f=f, u=u, t=t, slot=slot):
                    for aa in range(2):
                        va = VADDR + 2 * u + aa
                        a.ins("dsr", "ds_read_b64_tr_b16 v[%d:%d], v%d offset:%d" % (f + 2 * aa, f + 2 * aa + 1, va, slot * 16384 + t * 4096 + aa * 2048),
                              rd=[va], wr=[f + 2 * aa, f + 2 * aa + 1])
                pf = pb + 16 * (t >> 1) + 8 * (t & 1)
                def mm(a, f=f, u=u, pf=pf, z=(j == 0 and t == 0)):
                    a.mfma(OACC + 16 * u, f, pf, zero=z)
                M.append((ld, mm, 8))
    if -1 <= i <= 6:
        j = i + 1
        slot = j & 3
        sb = SBUF + 32 * (j & 1)
        for tt in range(2):
            for ez in range(8):
                f = FRAG + 4 * (frag_ctr[0] % 8); frag_ctr[0] += 1
                def ld(a, f=f, ez=ez, tt=tt, slot=slot):
                    ka = KADDR + ez
                    a.ins("dsr", "ds_read_b128 v[%d:%d], v%d offset:%d" % (f, f + 3, ka, slot * 16384 + tt * 8192),
                          rd=[ka], wr=R(f, 4))
                def mm(a, f=f, ez=ez, tt=tt, sb=sb):
                    a.mfma(sb + 16 * tt, f, QF + 4 * ez, zero=(ez == 0))
                M.append((ld, mm, 4))
    return M

DPRE = 5

def run_phase2(a):
    import copy
    its = list(range(-1, 9))
    Ms = {i: iter_items(i) for i in its}
    flat = [(i, n) for i in its for n in range(len(Ms[i]))]
    pos = {k: idx for idx, k in enumerate(flat)}
    issued = [0]
    def load_upto(idx):
        while issued[0] <= idx and issued[0] < len(flat):
            i, n = flat[issued[0]]
            Ms[i][n][0](a)
            issued[0] += 1
    for i in its:
        a.barrier()
        if i in (-1, 8):
            stamp(a)
        a.comment("---- iteration %d" % i)
        M = Ms[i]
        V = softmax_items(i) if 0 <= i <= 7 else []
        nM = len(M)
        tot = sum(x[0] for x in V)
        vi = 0; cum = 0
        if i == -1:
            load_upto(DPRE - 1)
        for n in range(nM):
            M[n][1](a)
            load_upto(pos[(i, n)] + DPRE)
            target = tot * (n + 1) / (nM - 1)
            while vi < len(V) and cum + V[vi][0] / 2 <= target:
                V[vi][2](a); cum += V[vi][0]; vi += 1
        while vi < len(V):
            V[vi][2](a); vi += 1
        if 1 <= i <= 7:
            a.raw("s_cmp_lg_u64 s[%d:%d], 0" % (S_FLAG, S_FLAG + 1))
            a.raw("s_cbranch_scc0 L_noresc%d" % i)
            saved = (a.slot, dict(a.w_valu), dict(a.w_trans), dict(a.w_mfma), list(a.vm), list(a.lg))
            for r in range(OACC, OACC + 64):
                a.valu("v_mul_f32 v%d, v%d, v%d" % (r, r, V_ALPHA), [r], [r, V_ALPHA])
            assert a.vm == saved[4] and a.lg == saved[5]
            a.raw("s_nop 1")
            a.label("L_noresc%d" % i)
            a.slot, a.w_valu, a.w_trans, a.w_mfma = saved[0], saved[1], saved[2], saved[3]

def consumer(a):
    a.valu("v_and_b32 v16, 31, v1", [16], [1])
    a.valu("v_lshrrev_b32 v17, 5, v1", [17], [1])
    a.salu("s_lshl_b32 s76, s4, 2")
    a.salu("s_add_u32 s76, s76, s3")
    a.salu("s_lshl_b32 s76, s76, 8")
    a.valu("v_lshrrev_b32 v19, 4, v1", [19], [1])
    a.valu("v_lshlrev_b32 v2, 16, v19", [2], [19])
    a.valu("v_and_b32 v18, 15, v1", [18], [1])
    a.valu("v_lshlrev_b32 v18, 4, v18", [18], [18])
    a.valu("v_add_u32 v2, v2, v18", [2], [2, 18])
    a.valu("v_add_u32 v2, s76, v2", [2], [2])
    for r in range(8):
        a.salu("s_mov_b32 s%d, %d" % (S_ROW + r, r * 8192))
    if EARLYQ:
        for s in range(NST):
            proj_loads(a, 'q', s)
    a.salu("s_lshl_b32 s76, s3, 8")
    a.valu("v_lshlrev_b32 v3, 14, v17", [3], [17])
    a.valu("v_and_b32 v20, 1, v19", [20], [19])
    a.valu("v_lshlrev_b32 v20, 12, v20", [20], [20])
    a.valu("v_add_u32 v3, v3, v20", [3], [3, 20])
    a.valu("v_add_u32 v3, v3, v18", [3], [3, 18])
    a.valu("v_add_u32 v3, s76, v3", [3], [3])
    a.valu("v_add_u32 v4, 0x2000, v3", [4], [3])
    a.salu("s_lshl_b32 s%d, s4, 19" % S_WOOFF)
    a.valu("v_lshlrev_b32 v13, 4, v1", [13], [1])
    a.valu("v_add_u32 v5, 0x%x, v13" % XO, [5], [13])
    a.salu("s_lshl_b32 s76, s3, 13")
    a.salu("s_add_u32 s76, s76, 0x%x" % XO)
    a.valu("v_lshrrev_b32 v20, 4, v16", [20], [16])
    a.valu("v_lshlrev_b32 v20, 10, v20", [20], [20])
    a.valu("v_lshlrev_b32 v21, 8, v17", [21], [17])
    a.valu("v_add_u32 v20, v20, v21", [20], [20, 21])
    a.valu("v_add_u32 v20, v20, v18", [20], [20, 18])
    a.valu("v_add_u32 v14, s76, v20", [14], [20])
    a.salu("s_lshl_b32 s76, s2, 2")
    a.salu("s_add_u32 s76, s76, s3")
    a.salu("s_lshl_b32 s76, s76, 14")
    for j in range(4):
        a.salu("s_add_u32 s%d, s76, %d" % (S_ST + j, j * 4096))
    a.valu("v_lshrrev_b32 v18, 4, v1", [18], [1])
    a.valu("v_and_b32 v18, 1, v18", [18], [18])
    a.valu("v_lshrrev_b32 v19, 2, v1", [19], [1])
    a.valu("v_and_b32 v19, 3, v19", [19], [19])
    a.valu("v_and_b32 v20, 3, v1", [20], [1])
    a.valu("v_lshrrev_b32 v21, 1, v20", [21], [20])
    a.valu("v_xor_b32 v21, v21, v17", [21], [21, 17])
    a.valu("v_lshlrev_b32 v22, 2, v19", [22], [19])
    a.valu("v_or_b32 v21, v21, v22", [21], [21, 22])
    a.valu("v_lshlrev_b32 v22, 1, v18", [22], [18])
    a.valu("v_or_b32 v21, v21, v22", [21], [21, 22])
    a.valu("v_lshlrev_b32 v21, 4, v21", [21], [21])
    a.valu("v_and_b32 v20, 1, v20", [20], [20])
    a.valu("v_lshlrev_b32 v20, 3, v20", [20], [20])
    a.valu("v_or_b32 v21, v21, v20", [21], [21, 20])
    a.valu("v_lshlrev_b32 v22, 2, v17", [22], [17])
    a.valu("v_add_u32 v22, v22, v19", [22], [22, 19])
    a.valu("v_lshlrev_b32 v22, 8, v22", [22], [22])
    a.valu("v_add_u32 v21, v21, v22", [21], [21, 22])
    a.valu("v_add_u32 v21, 0x%x, v21" % VRING, [21], [21])
    for u in range(4):
        for aa in range(2):
            d = VADDR + 2 * u + aa
            a.valu("v_xor_b32 v%d, 0x%x, v21" % (d, (4 * u + 2 * aa) << 4), [d], [21])
    a.valu("v_and_b32 v18, 15, v16", [18], [16])
    a.valu("v_lshlrev_b32 v19, 3, v17", [19], [17])
    a.valu("v_xor_b32 v18, v18, v19", [18], [18, 19])
    a.valu("v_lshlrev_b32 v18, 4, v18", [18], [18])
    a.valu("v_lshlrev_b32 v19, 8, v16", [19], [16])
    a.valu("v_add_u32 v15, v18, v19", [15], [18, 19])
    for e in range(8):
        d = KADDR + e
        a.valu("v_xor_b32 v%d, 0x%x, v15" % (d, e << 4), [d], [15])
    stamp(a)
    a.barrier()
    stamp(a)
    if not EARLYQ:
        for s in range(NST):
            proj_loads(a, 'q', s)
    proj_phase(a, 'q')
    for i in range(4):
        for nq in range(2):
            for p in range(4):
                t0 = OACC + (2 * (2 * p) + nq) * 4 + i
                t1 = OACC + (2 * (2 * p + 1) + nq) * 4 + i
                d = QF + 4 * (4 * nq + i) + p
                a.valu("v_cvt_pk_bf16_f32 v%d, v%d, v%d" % (d, t0, t1), [d], [t0, t1])
    for i in range(4):
        for p in range(4):
            da = QF + 4 * i + p
            db = QF + 4 * (4 + i) + p
            a.ins("perml", "v_permlane16_swap_b32 v%d, v%d" % (da, db), rd=[da, db], wr=[da, db])
    stamp(a)
    run_phase2(a)
    for s in range(NST):
        proj_loads(a, 'o', s)
    a.valu("v_mov_b32 v%d, v%d" % (V_T1, V_L), [V_T1], [V_L])
    a.ins("perml", "v_permlane32_swap_b32 v%d, v%d" % (V_L, V_T1), rd=[V_L, V_T1], wr=[V_L, V_T1])
    a.valu("v_add_f32 v%d, v%d, v%d" % (V_L, V_L, V_T1), [V_L], [V_L, V_T1])
    a.trans("v_rcp_f32 v%d, v%d" % (V_L, V_L), [V_L], [V_L])
    for u in range(4):
        for t in range(2):
            for p in range(4):
                r0 = OACC + 16 * u + 8 * t + 2 * p
                a.valu("v_mul_f32 v%d, v%d, v%d" % (r0, r0, V_L), [r0], [r0, V_L])
                a.valu("v_mul_f32 v%d, v%d, v%d" % (r0 + 1, r0 + 1, V_L), [r0 + 1], [r0 + 1, V_L])
            for p in range(4):
                r0 = OACC + 16 * u + 8 * t + 2 * p
                d = QF + 4 * (2 * u + t) + p
                a.valu("v_cvt_pk_bf16_f32 v%d, v%d, v%d" % (d, r0, r0 + 1), [d], [r0, r0 + 1])
            d = QF + 4 * (2 * u + t)
            a.ins("dsw", "ds_write_b128 v%d, v[%d:%d] offset:%d" % (V_XOW, d, d + 3, u * 2048 + t * 512), rd=[V_XOW] + R(d, 4))
    a.wait_lg(0)
    a.barrier()
    stamp(a)
    proj_phase(a, 'o')
    for j in range(4):
        for g in range(4):
            d = OACC + (4 * j + g) * 4
            off = (" offset:%d" % (g * 1024)) if g else ""
            a.ins("vst", "buffer_store_dwordx4 v[%d:%d], v%d, s[%d:%d], s%d offen%s" % (d, d + 3, V_ST, SRD_WS, SRD_WS + 3, S_ST + j, off),
                  rd=[V_ST] + R(d, 4), wide_store=True)
    stamp(a)
    stamp_flush(a)
    a.raw("s_endpgm")

def kernel1():
    out = []
    a = Asm()
    a.label(K1)
    if PROF:
        a.raw("s_memrealtime s[96:97]")
    a.raw("s_cmp_ge_u32 s2, 256")
    a.raw("s_cbranch_scc1 L_k1_end")
    a.raw("s_load_dwordx16 s[16:31], s[0:1], 0")
    a.valu("v_and_b32 v1, 63, v0", [1], [0])
    a.valu("v_lshrrev_b32 v2, 6, v0", [2], [0])
    a.ins("rfl", "v_readfirstlane_b32 s3, v2", rd=[2], swr=["s3"])
    a.salu("s_and_b32 s4, s2, 7")
    a.salu("s_lshr_b32 s5, s2, 3")
    a.salu("s_mov_b32 s%d, 0x05040100" % S_SELLO)
    a.salu("s_mov_b32 s%d, 0x07060302" % S_SELHI)
    a.salu("s_mov_b32 s%d, 0x%08x" % (S_C, f32bits(CSCALE)))
    a.salu("s_mov_b32 s%d, 0x%08x" % (S_TAU, f32bits(TAU)))
    a.raw("s_waitcnt lgkmcnt(0)")
    srd(a, 16, SRD_X, 0x100000)
    srd(a, 18, SRD_K, 0x2000000)
    srd(a, 20, SRD_V, 0x2000000)
    srd(a, 22, SRD_WQ, 0x400000)
    srd(a, 24, SRD_WO, 0x400000)
    srd(a, 30, SRD_WS, 0x1010000 if PROF else 0x1000000)
    a.raw("s_nop 4")
    a.raw("s_cmp_eq_u32 s3, 4")
    a.raw("s_cbranch_scc1 L_kprod")
    a.raw("s_cmp_eq_u32 s3, 5")
    a.raw("s_cbranch_scc1 L_vprod")
    out.append(a.text())
    c = Asm(); consumer(c); out.append(c.text())
    sys.stderr.write("consumer: %d slots, %d nop states\n" % (c.slot, c.nops))
    p = Asm(); p.label("L_kprod"); producer(p, True); out.append(p.text())
    p = Asm(); p.label("L_vprod"); producer(p, False); out.append(p.text())
    out.append("L_k1_end:\n    s_endpgm\n")
    return "".join(out)

def kernel2():
    a = Asm()
    a.label(K2)
    a.raw("s_cmp_ge_u32 s2, 256")
    a.raw("s_cbranch_scc1 L_k2_end")
    a.raw("s_load_dwordx2 s[16:17], s[0:1], 40")
    a.raw("s_load_dwordx2 s[18:19], s[0:1], 56")
    a.valu("v_and_b32 v1, 63, v0", [1], [0])
    a.valu("v_lshrrev_b32 v2, 6, v0", [2], [0])
    a.ins("rfl", "v_readfirstlane_b32 s3, v2", rd=[2], swr=["s3"])
    a.salu("s_lshr_b32 s5, s2, 3")
    a.salu("s_lshr_b32 s6, s2, 1")
    a.salu("s_and_b32 s6, s6, 3")
    a.salu("s_and_b32 s7, s2, 1")
    a.valu("v_lshlrev_b32 v3, 4, v1", [3], [1])
    a.valu("v_add_u32 v4, 0x1000, v3", [4], [3])
    a.valu("v_add_u32 v5, 0x2000, v3", [5], [3])
    a.valu("v_add_u32 v6, 0x3000, v3", [6], [3])
    a.salu("s_lshl_b32 s8, s5, 19")
    a.salu("s_lshl_b32 s9, s6, 14")
    a.salu("s_add_u32 s8, s8, s9")
    a.salu("s_lshl_b32 s9, s7, 10")
    a.salu("s_add_u32 s8, s8, s9")
    a.salu("s_lshl_b32 s9, s3, 17")
    a.salu("s_add_u32 s8, s8, s9")
    a.salu("s_add_u32 s9, s8, 0x10000")
    a.valu("v_and_b32 v8, 15, v1", [8], [1])
    a.valu("v_lshlrev_b32 v8, 10, v8", [8], [8])
    a.valu("v_lshrrev_b32 v9, 4, v1", [9], [1])
    a.valu("v_lshlrev_b32 v9, 6, v9", [9], [9])
    a.valu("v_add_u32 v8, v8, v9", [8], [8, 9])
    a.salu("s_lshl_b32 s10, s5, 15")
    a.salu("s_lshl_b32 s11, s6, 8")
    a.salu("s_add_u32 s10, s10, s11")
    a.salu("s_lshl_b32 s11, s7, 14")
    a.salu("s_add_u32 s10, s10, s11")
    a.salu("s_lshl_b32 s12, s3, 13")
    a.salu("s_sub_u32 s12, s12, 0x2000")
    a.valu("v_add_u32 v10, s12, v3", [10], [3])
    a.raw("s_waitcnt lgkmcnt(0)")
    srd(a, 16, 20, 0x100000)
    srd(a, 18, 24, 0x1000000)
    base = 16
    for hk in range(2):
        for j in range(8):
            d = base + (hk * 8 + j) * 4
            off = " offset:2048" if (j & 1) else ""
            a.ins("vld", "buffer_load_dwordx4 v[%d:%d], v%d, s[24:27], s%d offen%s" % (d, d + 3, 3 + (j >> 1), 8 + hk, off), rd=[3 + (j >> 1)], wr=R(d, 4))
    for k in range(32):
        a.valu("v_add_f32 v%d, v%d, v%d" % (base + k, base + k, base + 32 + k), [base + k], [base + k, base + 32 + k])
    a.raw("s_cmp_eq_u32 s3, 0")
    a.raw("s_cbranch_scc1 L_k2_w0")
    b = Asm(); b.slot = 1000
    for j in range(8):
        d = base + 4 * j
        b.ins("dsw", "ds_write_b128 v10, v[%d:%d] offset:%d" % (d, d + 3, j * 1024), rd=[10] + R(d, 4))
    b.wait_lg(0)
    b.barrier()
    b.raw("s_endpgm")
    c = Asm(); c.label("L_k2_w0")
    c.barrier()
    for v in range(3):
        for j in range(8):
            d = 64 + (v * 8 + j) * 4
            c.ins("dsr", "ds_read_b128 v[%d:%d], v3 offset:%d" % (d, d + 3, v * 8192 + j * 1024), rd=[3], wr=R(d, 4))
    for v in range(3):
        for k in range(32):
            c.valu("v_add_f32 v%d, v%d, v%d" % (base + k, base + k, 64 + v * 32 + k), [base + k], [base + k, 64 + v * 32 + k])
    o = 160
    for i in range(4):
        for pr in range(4):
            d = o + 4 * i + pr
            x0 = base + (2 * pr) * 4 + i
            x1 = base + (2 * pr + 1) * 4 + i
            c.valu("v_cvt_pk_bf16_f32 v%d, v%d, v%d" % (d, x0, x1), [d], [x0, x1])
    for i in range(4):
        off = (" offset:%d" % (16 * i)) if i else ""
        c.ins("vst", "buffer_store_dwordx4 v[%d:%d], v8, s[20:23], s10 offen%s" % (o + 4 * i, o + 4 * i + 3, off), rd=[8] + R(o + 4 * i, 4), wide_store=True)
    c.label("L_k2_end")
    c.raw("s_endpgm")
    return a.text() + b.text() + c.text()

def desc(name, nv, ns=102):
    return """.amdhsa_kernel %s
  .amdhsa_next_free_vgpr %d
  .amdhsa_next_free_sgpr %d
  .amdhsa_accum_offset %d
  .amdhsa_group_segment_fixed_size 0
  .amdhsa_kernarg_size 64
  .amdhsa_user_sgpr_count 2
  .amdhsa_user_sgpr_kernarg_segment_ptr 1
  .amdhsa_system_sgpr_workgroup_id_x 1
.end_amdhsa_kernel
""" % (name, nv, ns, nv)

def main(path):
    hdr = """; Kernarg layout for this problem (64 bytes, ptrs only, base s[0:1]):
;   offset   0: x   8: k_cache  16: v_cache  24: wq  32: wo  40: d_out  48: d_debug  56: d_ws
; @launch kernel=%s grid=(256,1,1) block=(384,1,1) lds=%d
; @launch kernel=%s grid=(256,1,1) block=(256,1,1) lds=24576
.amdgcn_target "amdgcn-amd-amdhsa--gfx950"
.text
""" % (K1, LDS_BYTES, K2)
    s = hdr
    for nm, body in ((K1, kernel1()), (K2, kernel2())):
        s += ".globl %s\n.p2align 8\n.type %s,@function\n" % (nm, nm) + body
    s += '.section .rodata,"a"\n.p2align 6\n' + desc(K1, 256) + ".p2align 6\n" + desc(K2, 192)
    open(path, "w").write(s)

if __name__ == "__main__":
    main(sys.argv[1] if len(sys.argv) > 1 else "cdna_kernels/%s.s" % NAME)
```

```python
class Asm:
    def __init__(self):
        self.out = []
        self.slot = 0
        self.w_valu = {}
        self.w_trans = {}
        self.w_mfma = {}
        self.st_rd = {}
        self.sg_valu = {}
        self.m0_w = -100
        self.vm = []
        self.lg = []
        self.nops = 0

    def raw(self, text, states=1):
        self.out.append("    " + text)
        self.slot += states

    def comment(self, text):
        self.out.append("    ; " + text)

    def label(self, name):
        self.out.append(name + ":")

    def nop(self, n):
        while n > 0:
            k = min(n, 16)
            self.raw("s_nop %d" % (k - 1), k)
            self.nops += k
            n -= k

    def _need(self, since, n):
        gap = self.slot - since - 1
        return max(0, n - gap)

    def wait_vm(self, n):
        if len(self.vm) > n:
            self.raw("s_waitcnt vmcnt(%d)" % n)
            del self.vm[: len(self.vm) - n]

    def wait_lg(self, n):
        if len(self.lg) > n:
            self.raw("s_waitcnt lgkmcnt(%d)" % n)
            del self.lg[: len(self.lg) - n]

    def _auto_wait(self, regs):
        nv = None
        for idx in range(len(self.vm) - 1, -1, -1):
            if self.vm[idx] & regs:
                nv = len(self.vm) - 1 - idx
                break
        nl = None
        for idx in range(len(self.lg) - 1, -1, -1):
            if self.lg[idx] & regs:
                nl = len(self.lg) - 1 - idx
                break
        if nv is not None and nl is not None:
            self.raw("s_waitcnt vmcnt(%d) lgkmcnt(%d)" % (nv, nl))
            del self.vm[: len(self.vm) - nv]
            del self.lg[: len(self.lg) - nl]
        elif nv is not None:
            self.wait_vm(nv)
        elif nl is not None:
            self.wait_lg(nl)

    def ins(self, kind, text, rd=(), wr=(), srd=(), swr=(), chain=None, wide_store=False, uses_m0=False):
        rd = set(rd)
        wr = set(wr)
        allr = rd | wr
        self._auto_wait(allr)
        if kind in ("vld", "vst", "dma") and len(self.vm) >= 63:
            self.wait_vm(62)
        if kind in ("dsr", "dsw") and len(self.lg) >= 15:
            self.wait_lg(14)
        pad = 0
        for r in allr:
            if r in self.w_mfma:
                s, d = self.w_mfma[r]
                if kind == "mfma":
                    if chain is not None and d == chain[0] and chain[0] <= r < chain[0] + 16 and r not in chain[1]:
                        continue
                    if r in wr and r not in rd:
                        continue
                    pad = max(pad, self._need(s, 12))
                else:
                    pad = max(pad, self._need(s, 12))
        if kind == "mfma":
            for r in rd:
                if r in self.w_valu:
                    pad = max(pad, self._need(self.w_valu[r], 2))
        if kind in ("valu", "perml", "rfl"):
            for r in rd:
                if r in self.w_trans:
                    pad = max(pad, self._need(self.w_trans[r], 1))
        if kind == "perml":
            for r in rd:
                if r in self.w_valu:
                    pad = max(pad, self._need(self.w_valu[r], 2))
        if kind == "rfl":
            for r in rd:
                if r in self.w_valu:
                    pad = max(pad, self._need(self.w_valu[r], 1))
        for r in wr:
            if r in self.st_rd:
                pad = max(pad, self._need(self.st_rd[r], 2))
        for s in srd:
            if s in self.sg_valu:
                n = 5 if kind in ("vld", "vst", "dma") else 2
                pad = max(pad, self._need(self.sg_valu[s], n))
        if uses_m0:
            pad = max(pad, self._need(self.m0_w, 1))
        if pad:
            self.nop(pad)
        me = self.slot
        self.raw(text)
        if kind in ("valu", "perml", "rfl", "trans"):
            for r in wr:
                self.w_valu[r] = me
                self.w_mfma.pop(r, None)
                if kind == "trans":
                    self.w_trans[r] = me
                else:
                    self.w_trans.pop(r, None)
            for s in swr:
                self.sg_valu[s] = me
        elif kind == "mfma":
            d = min(wr)
            for r in wr:
                self.w_mfma[r] = (me, d)
                self.w_valu.pop(r, None)
                self.w_trans.pop(r, None)
        elif kind in ("vld", "vst", "dma"):
            self.vm.append(frozenset(wr))
            for r in wr:
                self.w_valu.pop(r, None); self.w_mfma.pop(r, None); self.w_trans.pop(r, None)
            if wide_store:
                for r in rd:
                    self.st_rd[r] = me
        elif kind in ("dsr", "dsw"):
            self.lg.append(frozenset(wr))
            for r in wr:
                self.w_valu.pop(r, None); self.w_mfma.pop(r, None); self.w_trans.pop(r, None)
        elif kind == "salu":
            for s in swr:
                self.sg_valu.pop(s, None)
                if s == "m0":
                    self.m0_w = me

    def valu(self, text, wr=(), rd=(), **kw):
        self.ins("valu", text, rd, wr, **kw)

    def trans(self, text, wr=(), rd=()):
        self.ins("trans", text, rd, wr)

    def salu(self, text, swr=()):
        self.ins("salu", text, swr=swr)

    def mfma(self, d, a, b, zero=False):
        D = set(range(d, d + 16)); A = set(range(a, a + 4)); B = set(range(b, b + 4))
        if zero:
            self.ins("mfma", "v_mfma_f32_32x32x16_bf16 v[%d:%d], v[%d:%d], v[%d:%d], 0" % (d, d + 15, a, a + 3, b, b + 3),
                     rd=A | B, wr=D)
        else:
            self.ins("mfma", "v_mfma_f32_32x32x16_bf16 v[%d:%d], v[%d:%d], v[%d:%d], v[%d:%d]" % (d, d + 15, a, a + 3, b, b + 3, d, d + 15),
                     rd=A | B | D, wr=D, chain=(d, A | B))

    def mfma_c(self, d, a, b, c):
        D = set(range(d, d + 16)); A = set(range(a, a + 4)); B = set(range(b, b + 4)); C = set(range(c, c + 16))
        self.ins("mfma", "v_mfma_f32_32x32x16_bf16 v[%d:%d], v[%d:%d], v[%d:%d], v[%d:%d]" % (d, d + 15, a, a + 3, b, b + 3, c, c + 15),
                 rd=A | B | C, wr=D)

    def mfma16(self, d, a, b, zero=False):
        D = set(range(d, d + 4)); A = set(range(a, a + 4)); B = set(range(b, b + 4))
        if zero:
            self.ins("mfma", "v_mfma_f32_16x16x32_bf16 v[%d:%d], v[%d:%d], v[%d:%d], 0" % (d, d + 3, a, a + 3, b, b + 3),
                     rd=A | B, wr=D)
        else:
            self.ins("mfma", "v_mfma_f32_16x16x32_bf16 v[%d:%d], v[%d:%d], v[%d:%d], v[%d:%d]" % (d, d + 3, a, a + 3, b, b + 3, d, d + 3),
                     rd=A | B | D, wr=D, chain=(d, A | B))

    def barrier(self):
        self.raw("s_barrier")

    def text(self):
        return "\n".join(self.out) + "\n"


def R(a, n):
    return list(range(a, a + n))
```

```python
import sys, struct, math
sys.path.insert(0, "work")
from asmlib import Asm, R

NAME = "standalone__gqa_block_cached__near_ridge"
K1 = NAME + "_kernel"
K2 = "reduce_kernel"

KRING = 0
VRING = 65536
XO = 131072
LDS_BYTES = 163840

SRD_X, SRD_K, SRD_V, SRD_WQ, SRD_WO, SRD_WS = 32, 36, 40, 44, 48, 52
S_SELLO, S_SELHI, S_C = 56, 57, 58
S_ROW = 60
S_WOOFF = 68
S_ST = 70
S_T0 = 76
S_TAU = 59
S_FLAG = 74
TAU = 8.0

def f32bits(x):
    return struct.unpack("<I", struct.pack("<f", x))[0]

CSCALE = (128.0 ** -0.5) * math.log2(math.e)
import os
PROF = int(os.environ.get("PROF", "0"))
VAR_A = int(os.environ.get("VAR_A", "0"))
EARLYQ = int(os.environ.get("EARLYQ", "0"))
PPRIO = int(os.environ.get("PPRIO", "0"))
_stamp = [0]
PST = os.environ.get("PST", "preB0,B0,ph1,it-1,it8,B11,ph3").split(",")
def stamp(a, name):
    if not PROF or name not in PST:
        return
    k = _stamp[0]; _stamp[0] += 1
    assert k < 8
    a.raw("%s s[%d:%d]" % ("s_memtime" if os.environ.get("PCYC") else "s_memrealtime", 80 + 2 * k, 81 + 2 * k))
def stamp_flush(a):
    if not PROF:
        return
    a.raw("s_cmp_lg_u32 s3, 0")
    a.raw("s_cbranch_scc1 L_noflush")
    a.raw("s_waitcnt vmcnt(0)")
    a.raw("s_memrealtime s[98:99]")
    a.raw("s_waitcnt lgkmcnt(0)")
    a.salu("s_lshl_b32 s76, s2, 8")
    a.salu("s_add_u32 s76, s76, 0x1000000")
    a.valu("v_mov_b32 v253, 0", [253], [])
    for k in list(range(_stamp[0])) + [8, 9]:
        a.valu("v_mov_b32 v252, s%d" % (80 + 2 * k), [252], [])
        a.ins("vst", "buffer_store_dword v252, v253, s[%d:%d], s76 offen offset:%d" % (SRD_WS, SRD_WS + 3, 4 * k), rd=[252, 253])
        a.raw("s_waitcnt vmcnt(0)")
    a.label("L_noflush")

def srd(a, base_lo, dst, size):
    a.salu("s_mov_b32 s%d, s%d" % (dst, base_lo))
    a.salu("s_and_b32 s%d, s%d, 0xffff" % (dst + 1, base_lo + 1))
    a.salu("s_mov_b32 s%d, 0x%x" % (dst + 2, size))
    a.salu("s_mov_b32 s%d, 0x00020000" % (dst + 3))

def producer(a, is_k):
    ring = KRING if is_k else VRING
    if PPRIO:
        a.raw("s_setprio %d" % PPRIO)
    sr = SRD_K if is_k else SRD_V
    a.valu("v_and_b32 v3, 15, v1", [3], [1])
    a.valu("v_lshlrev_b32 v2, 10, v3", [2], [3])
    a.valu("v_lshrrev_b32 v3, 4, v1", [3], [1])
    a.valu("v_lshlrev_b32 v3, 4, v3", [3], [3])
    a.valu("v_add_u32 v2, v2, v3", [2], [2, 3])
    a.valu("v_lshrrev_b32 v8, 4, v1", [8], [1])
    a.valu("v_and_b32 v9, 15, v1", [9], [1])
    a.valu("v_lshlrev_b32 v10, 8, v8", [10], [8])
    for ii in range(4):
        if is_k:
            a.valu("v_add_u32 v11, %d, v8" % (4 * ii), [11], [8])
        else:
            a.valu("v_lshlrev_b32 v11, 2, v8", [11], [8])
            a.valu("v_or_b32 v11, %d, v11" % ii, [11], [11])
        a.valu("v_xor_b32 v11, v9, v11", [11], [9, 11])
        a.valu("v_lshlrev_b32 v11, 4, v11", [11], [11])
        a.valu("v_add_u32 v%d, v10, v11" % (4 + ii), [4 + ii], [10, 11])
    a.salu("s_lshl_b32 s76, s5, 15")
    a.salu("s_lshl_b32 s77, s2, 17")
    s0 = 0 if is_k else 16
    for s in range(s0, s0 + 16):
        a.salu("s_add_u32 s78, s76, %d" % ((s >> 1) * 64 + (s & 1) * 16384))
        a.salu("s_mov_b32 m0, %d" % (XO + s * 1024), swr=["m0"])
        a.ins("dma", "buffer_load_dwordx4 v2, s[%d:%d], s78 offen lds" % (SRD_X, SRD_X + 3), rd=[2], uses_m0=True)

    a.valu("v_lshlrev_b32 v12, 4, v1", [12], [1])
    a.salu("s_lshl_b32 s79, s5, 17")
    a.salu("s_lshl_b32 s78, s4, 10")
    a.salu("s_add_u32 s79, s79, s78")
    for r in range(8):
        rr = r if is_k else r + 8
        a.salu("s_add_u32 s78, s79, %d" % (rr * 8192))
        d = 32 + 4 * r
        a.ins("vld", "buffer_load_dwordx4 v[%d:%d], v12, s[%d:%d], s78 offen" % (d, d + 3, SRD_WQ, SRD_WQ + 3), rd=[12], wr=R(d, 4))

    def wo_prefetch():
        a.salu("s_lshl_b32 s79, s4, 19")
        a.salu("s_lshl_b32 s78, s5, 14")
        a.salu("s_add_u32 s79, s79, s78")
        for r in range(16):
            a.salu("s_add_u32 s78, s79, %d" % (r * 1024))
            d = 64 + 4 * r
            a.ins("vld", "buffer_load_dwordx4 v[%d:%d], v12, s[%d:%d], s78 offen" % (d, d + 3, SRD_WO, SRD_WO + 3), rd=[12], wr=R(d, 4))

    def tile(j):
        if j == 4:
            lbase = XO + (0 if is_k else 16384)
        else:
            lbase = ring + (j if j < 4 else j - 5) * 16384
        for g in range(4):
            a.salu("s_add_u32 s78, s77, %d" % (j * 16384 + g * 4096))
            a.salu("s_mov_b32 m0, %d" % (lbase + g * 4096), swr=["m0"])
            for ii in range(4):
                off = (" offset:%d" % (ii * 1024)) if ii else ""
                a.ins("dma", "buffer_load_dwordx4 v%d, s[%d:%d], s78 offen%s nt lds" % (4 + ii, sr, sr + 3, off),
                      rd=[4 + ii], uses_m0=True)

    pst = [-int(os.environ.get("PSKIP", "0"))]
    def B():
        if PROF and pst[0] < 8:
            k = pst[0]; pst[0] += 1
            if k >= 0:
                a.raw("s_memrealtime s[%d:%d]" % (80 + 2 * k, 81 + 2 * k))
        a.barrier()
    W = a.wait_vm
    if is_k:
        tile(0); tile(1); W(32); B()
        tile(2); tile(3); W(32); B()
        tile(4); B()
        tile(5); W(48); B()
        tile(6); W(48); B()
        tile(7); W(48); B()
        wo_prefetch(); W(48); B()
        W(32); B()
        W(16); B()
        W(0)
    else:
        tile(0); tile(1); W(32); B()
        tile(2); tile(3); W(32); B()
        tile(4); B()
        B()
        W(32); B()
        tile(5); W(32); B()
        tile(6); W(32); B()
        tile(7); W(32); B()
        W(16); B()
        W(0); B()
    if PROF:
        a.raw("s_waitcnt lgkmcnt(0)")
        a.salu("s_lshl_b32 s76, s2, 8")
        a.salu("s_add_u32 s76, s76, 0x1000000")
        a.valu("v_mov_b32 v253, 0", [253], [])
        for k in range(8):
            a.valu("v_mov_b32 v%d, s%d" % (240 + k, 80 + 2 * k), [240 + k], [])
            a.ins("vst", "buffer_store_dword v%d, v253, s[%d:%d], s76 offen offset:%d" % (240 + k, SRD_WS, SRD_WS + 3, (64 if is_k else 128) + 4 * k), rd=[240 + k, 253])
    a.raw("s_endpgm")

V_WQOFF = 2
V_WOOFF = 3
V_XO = 5
V_XOW = 14
V_L = 8
V_ALPHA = 9
V_T0, V_T1 = 10, 15
V_M = [6, 12]
V_MC = [7, 11]
V_SUM = [248, 249, 250, 251]
V_ST = 13
KADDR = 16
VADDR = 24
QF = 32
OACC = 64
SBUF = 128
FRAG = 192
LBUF = 128
NST = 3
AFR = 224
BFR = 32

def proj_phase(a, which):
    def perms(s, j):
        buf = LBUF + (s % NST) * 32
        sel = S_SELLO if (j & 1) == 0 else S_SELHI
        q = j >> 1
        for p in range(4):
            lo = buf + (2 * p) * 4 + q
            hi = buf + (2 * p + 1) * 4 + q
            d = AFR + 4 * j + p
            a.valu("v_perm_b32 v%d, v%d, v%d, s%d" % (d, hi, lo, sel), [d], [hi, lo])
    def bread(s):
        for nq in range(2):
            d = BFR + (s & 1) * 8 + 4 * nq
            a.ins("dsr", "ds_read_b128 v[%d:%d], v%d offset:%d" % (d, d + 3, V_XO, (2 * s + nq) * 1024), rd=[V_XO], wr=R(d, 4))
    bread(0)
    bread(1)
    for j in range(8):
        perms(0, j)
    for s in range(16):
        for j in range(8):
            for nq in range(2):
                a.mfma16(OACC + (2 * j + nq) * 4, AFR + 4 * j, BFR + (s & 1) * 8 + 4 * nq, zero=(s == 0))
            if j == 7 and s + 2 < 16:
                bread(s + 2)
            if s + 1 < 16:
                perms(s + 1, j)
            if s + NST < 16:
                proj_load1(a, which, s + NST, j)

def proj_load1(a, which, s, r):
    buf = LBUF + (s % NST) * 32
    d = buf + 4 * r
    if which == 'q':
        a.ins("vld", "buffer_load_dwordx4 v[%d:%d], v%d, s[%d:%d], s%d offen" % (d, d + 3, V_WQOFF, SRD_WQ, SRD_WQ + 3, S_ROW + r),
              rd=[V_WQOFF], wr=R(d, 4))
        a.salu("s_add_u32 s%d, s%d, 0x40000" % (S_ROW + r, S_ROW + r))
    else:
        aa, rr = r >> 2, r & 3
        off = (" offset:%d" % (rr * 1024)) if rr else ""
        a.ins("vld", "buffer_load_dwordx4 v[%d:%d], v%d, s[%d:%d], s%d offen%s" % (d, d + 3, V_WOOFF + aa, SRD_WO, SRD_WO + 3, S_WOOFF, off),
              rd=[V_WOOFF + aa], wr=R(d, 4))
        if r == 7:
            a.salu("s_add_u32 s%d, s%d, 0x8000" % (S_WOOFF, S_WOOFF))

def proj_loads(a, which, s):
    for r in range(8):
        proj_load1(a, which, s, r)

CBLK = 224
S_ONES = 69

def hz_save(a):
    return (a.slot, dict(a.w_valu), dict(a.w_trans), dict(a.w_mfma), list(a.vm), list(a.lg))
def hz_restore(a, sv):
    assert a.vm == sv[4] and a.lg == sv[5]
    a.slot, a.w_valu, a.w_trans, a.w_mfma = sv[0], sv[1], sv[2], sv[3]

def softmax_items(i):
    it = []
    sb = SBUF + 32 * (i & 1)
    BIG = 1 << 20
    def add(cost, fn, before=BIG):
        it.append((cost, before, fn))
    def v(text, wr, rd, cost=4, before=BIG):
        add(cost, lambda a: a.valu(text, wr, rd), before)
    def tr(text, wr, rd):
        add(8, lambda a: a.trans(text, wr, rd))
    tA, tB = V_T0, V_T1
    hb = 0 if i == 0 else 16
    chains = []
    for (t, base) in ((tA, sb), (tB, sb + 16)):
        c = [("v_max3_f32 v%d, v%d, v%d, v%d" % (t, base, base + 1, base + 2), [t], [base, base + 1, base + 2])]
        for k in range(3, 15, 2):
            c.append(("v_max3_f32 v%d, v%d, v%d, v%d" % (t, t, base + k, base + k + 1), [t], [t, base + k, base + k + 1]))
        chains.append(c)
    for x, y in zip(*chains):
        v(*x, before=hb); v(*y, before=hb)
    v("v_max3_f32 v%d, v%d, v%d, v%d" % (tA, tA, sb + 15, sb + 31), [tA], [tA, sb + 15, sb + 31], before=hb)
    v("v_max_f32 v%d, v%d, v%d" % (tA, tA, tB), [tA], [tA, tB], before=hb)
    if i == 0:
        v("v_mov_b32 v%d, v%d" % (tB, tA), [tB], [tA], before=0)
        add(4, lambda a: a.ins("perml", "v_permlane32_swap_b32 v%d, v%d" % (tA, tB), rd=[tA, tB], wr=[tA, tB]), 0)
        v("v_max_f32 v%d, v%d, v%d" % (tA, tA, tB), [tA], [tA, tB], before=0)
        for k in range(16):
            v("v_sub_f32 v%d, 0, v%d" % (CBLK + k, tA), [CBLK + k], [tA], before=0)
    else:
        def upd(a):
            a.ins("valu", "v_cmp_lt_f32 vcc, s%d, v%d" % (S_TAU, tA), rd=[tA], swr=["vcc"])
            a.raw("s_cbranch_vccz L_noupd%d" % i)
            sv = hz_save(a)
            a.raw("s_nop 2", 3)
            a.valu("v_mov_b32 v%d, v%d" % (tB, tA), [tB], [tA])
            a.ins("perml", "v_permlane32_swap_b32 v%d, v%d" % (tA, tB), rd=[tA, tB], wr=[tA, tB])
            a.valu("v_max_f32 v%d, v%d, v%d" % (tA, tA, tB), [tA], [tA, tB])
            a.ins("valu", "v_cmp_lt_f32 vcc, s%d, v%d" % (S_TAU, tA), rd=[tA], swr=["vcc"])
            a.ins("valu", "v_cndmask_b32 v%d, 0, v%d, vcc" % (tA, tA), rd=[tA], wr=[tA], srd=["vcc"])
            a.trans("v_exp_f32 v%d, -v%d" % (V_ALPHA, tA), [V_ALPHA], [tA])
            for k in range(32):
                a.valu("v_sub_f32 v%d, v%d, v%d" % (sb + k, sb + k, tA), [sb + k], [sb + k, tA])
            for k in range(16):
                a.valu("v_sub_f32 v%d, v%d, v%d" % (CBLK + k, CBLK + k, tA), [CBLK + k], [CBLK + k, tA])
            for r in V_SUM:
                a.valu("v_mul_f32 v%d, v%d, v%d" % (r, r, V_ALPHA), [r], [r, V_ALPHA])
            a.salu("s_mov_b64 s[%d:%d], -1" % (S_FLAG, S_FLAG + 1))
            a.raw("s_nop 1", 2)
            a.label("L_noupd%d" % i)
            hz_restore(a, sv)
        add(8, upd, 16)
    for g in range(4):
        b8 = sb + 8 * g
        def e(k):
            r = b8 + k
            if i == 0:
                v("v_sub_f32 v%d, v%d, v%d" % (r, r, tA), [r], [r, tA])
            tr("v_exp_f32 v%d, v%d" % (r, r), [r], [r])
        def c(p):
            d = b8 + p
            v("v_cvt_pk_bf16_f32 v%d, v%d, v%d" % (d, b8 + 2 * p, b8 + 2 * p + 1), [d], [b8 + 2 * p, b8 + 2 * p + 1])
        def dt(p):
            d = b8 + p
            sr = V_SUM[p]
            if i == 0 and g == 0:
                v("v_dot2_f32_bf16 v%d, v%d, s%d, 0" % (sr, d, S_ONES), [sr], [d])
            else:
                v("v_dot2_f32_bf16 v%d, v%d, s%d, v%d" % (sr, d, S_ONES, sr), [sr], [d, sr])
        e(0); e(1); e(2); c(0); e(3); e(4); c(1); e(5); e(6); c(2); e(7); dt(0); c(3); dt(1); dt(2); dt(3)
    return it

frag_ctr = [0]

def iter_items(i):
    M = []
    if 1 <= i <= 8:
        j = i - 1
        slot = 0 if j == 4 else (j if j < 4 else j - 5)
        far = (XO + 16384 - VRING) if j == 4 else 0
        pb = SBUF + 32 * (j & 1)
        for t in range(4):
            for u in range(4):
                f = FRAG + 4 * (frag_ctr[0] % 8); frag_ctr[0] += 1
                def ld(a, f=f, u=u, t=t, slot=slot, far=far):
                    for aa in range(2):
                        va = VADDR + 2 * u + aa
                        if far and t == 0:
                            a.valu("v_add_u32 v%d, 0x%x, v%d" % (va, far, va), [va], [va])
                        a.ins("dsr", "ds_read_b64_tr_b16 v[%d:%d], v%d offset:%d" % (f + 2 * aa, f + 2 * aa + 1, va, slot * 16384 + t * 4096 + aa * 2048),
                              rd=[va], wr=[f + 2 * aa, f + 2 * aa + 1])
                        if far and t == 3:
                            a.valu("v_subrev_u32 v%d, 0x%x, v%d" % (va, far, va), [va], [va])
                pf = pb + 16 * (t >> 1) + 8 * (t & 1)
                def mm(a, f=f, u=u, pf=pf, z=(j == 0 and t == 0)):
                    a.mfma(OACC + 16 * u, f, pf, zero=z)
                M.append((ld, mm, 8))
    if -1 <= i <= 6:
        j = i + 1
        slot = 0 if j == 4 else (j if j < 4 else j - 5)
        far = (XO - KRING) if j == 4 else 0
        sb = SBUF + 32 * (j & 1)
        for tt in range(2):
            for ez in range(8):
                f = FRAG + 4 * (frag_ctr[0] % 8); frag_ctr[0] += 1
                def ld(a, f=f, ez=ez, tt=tt, slot=slot, far=far):
                    ka = KADDR + ez
                    if far and tt == 0:
                        a.valu("v_add_u32 v%d, 0x%x, v%d" % (ka, far, ka), [ka], [ka])
                    a.ins("dsr", "ds_read_b128 v[%d:%d], v%d offset:%d" % (f, f + 3, ka, slot * 16384 + tt * 8192),
                          rd=[ka], wr=R(f, 4))
                    if far and tt == 1:
                        a.valu("v_subrev_u32 v%d, 0x%x, v%d" % (ka, far, ka), [ka], [ka])
                def mm(a, f=f, ez=ez, tt=tt, sb=sb, j=j):
                    if ez == 0 and j >= 1:
                        a.mfma_c(sb + 16 * tt, f, QF + 4 * ez, CBLK)
                    else:
                        a.mfma(sb + 16 * tt, f, QF + 4 * ez, zero=(ez == 0))
                M.append((ld, mm, 4))
    return M

DPRE = 5

def run_phase2(a):
    import copy
    its = list(range(-1, 9))
    Ms = {i: iter_items(i) for i in its}
    flat = [(i, n) for i in its for n in range(len(Ms[i]))]
    pos = {k: idx for idx, k in enumerate(flat)}
    issued = [0]
    def load_upto(idx):
        while issued[0] <= idx and issued[0] < len(flat):
            i, n = flat[issued[0]]
            Ms[i][n][0](a)
            issued[0] += 1
    for i in its:
        a.barrier()
        stamp(a, "it%d" % i)
        a.comment("---- iteration %d" % i)
        M = Ms[i]
        V = softmax_items(i) if 0 <= i <= 7 else []
        nM = len(M)
        tot = sum(x[0] for x in V)
        vi = 0; cum = 0
        if i == -1:
            load_upto(DPRE - 1)
        for n in range(nM):
            while vi < len(V) and any(x[1] <= n for x in V[vi:]):
                V[vi][2](a); cum += V[vi][0]; vi += 1
            M[n][1](a)
            load_upto(pos[(i, n)] + DPRE)
            target = tot * (n + 1) / (nM - 1)
            while vi < len(V) and cum + V[vi][0] / 2 <= target:
                V[vi][2](a); cum += V[vi][0]; vi += 1
        while vi < len(V):
            V[vi][2](a); vi += 1
        if 1 <= i <= 7:
            a.raw("s_cmp_lg_u64 s[%d:%d], 0" % (S_FLAG, S_FLAG + 1))
            a.raw("s_cbranch_scc0 L_noresc%d" % i)
            saved = hz_save(a)
            for r in range(OACC, OACC + 64):
                a.valu("v_mul_f32 v%d, v%d, v%d" % (r, r, V_ALPHA), [r], [r, V_ALPHA])
            a.salu("s_mov_b64 s[%d:%d], 0" % (S_FLAG, S_FLAG + 1))
            a.raw("s_nop 1")
            a.label("L_noresc%d" % i)
            hz_restore(a, saved)
        stamp(a, "e%d" % i)

def consumer(a):
    a.valu("v_and_b32 v16, 31, v1", [16], [1])
    a.valu("v_lshrrev_b32 v17, 5, v1", [17], [1])
    a.salu("s_lshl_b32 s76, s4, 2")
    a.salu("s_add_u32 s76, s76, s3")
    a.salu("s_lshl_b32 s76, s76, 8")
    a.valu("v_lshrrev_b32 v19, 4, v1", [19], [1])
    a.valu("v_lshlrev_b32 v2, 16, v19", [2], [19])
    a.valu("v_and_b32 v18, 15, v1", [18], [1])
    a.valu("v_lshlrev_b32 v18, 4, v18", [18], [18])
    a.valu("v_add_u32 v2, v2, v18", [2], [2, 18])
    a.valu("v_add_u32 v2, s76, v2", [2], [2])
    for r in range(8):
        a.salu("s_mov_b32 s%d, %d" % (S_ROW + r, r * 8192))
    if EARLYQ:
        for s in range(NST):
            proj_loads(a, 'q', s)
    a.salu("s_lshl_b32 s76, s3, 8")
    a.valu("v_lshlrev_b32 v3, 14, v17", [3], [17])
    a.valu("v_and_b32 v20, 1, v19", [20], [19])
    a.valu("v_lshlrev_b32 v20, 12, v20", [20], [20])
    a.valu("v_add_u32 v3, v3, v20", [3], [3, 20])
    a.valu("v_add_u32 v3, v3, v18", [3], [3, 18])
    a.valu("v_add_u32 v3, s76, v3", [3], [3])
    a.valu("v_add_u32 v4, 0x2000, v3", [4], [3])
    a.salu("s_lshl_b32 s%d, s4, 19" % S_WOOFF)
    a.valu("v_lshlrev_b32 v13, 4, v1", [13], [1])
    a.valu("v_add_u32 v5, 0x%x, v13" % XO, [5], [13])
    a.salu("s_lshl_b32 s76, s3, 13")
    a.salu("s_add_u32 s76, s76, 0x%x" % XO)
    a.valu("v_lshrrev_b32 v20, 4, v16", [20], [16])
    a.valu("v_lshlrev_b32 v20, 10, v20", [20], [20])
    a.valu("v_lshlrev_b32 v21, 8, v17", [21], [17])
    a.valu("v_add_u32 v20, v20, v21", [20], [20, 21])
    a.valu("v_add_u32 v20, v20, v18", [20], [20, 18])
    a.valu("v_add_u32 v14, s76, v20", [14], [20])
    a.salu("s_lshl_b32 s76, s2, 2")
    a.salu("s_add_u32 s76, s76, s3")
    a.salu("s_lshl_b32 s76, s76, 14")
    for j in range(4):
        a.salu("s_add_u32 s%d, s76, %d" % (S_ST + j, j * 4096))
    a.valu("v_lshrrev_b32 v18, 4, v1", [18], [1])
    a.valu("v_and_b32 v18, 1, v18", [18], [18])
    a.valu("v_lshrrev_b32 v19, 2, v1", [19], [1])
    a.valu("v_and_b32 v19, 3, v19", [19], [19])
    a.valu("v_and_b32 v20, 3, v1", [20], [1])
    a.valu("v_lshrrev_b32 v21, 1, v20", [21], [20])
    a.valu("v_xor_b32 v21, v21, v17", [21], [21, 17])
    a.valu("v_lshlrev_b32 v22, 2, v19", [22], [19])
    a.valu("v_or_b32 v21, v21, v22", [21], [21, 22])
    a.valu("v_lshlrev_b32 v22, 1, v18", [22], [18])
    a.valu("v_or_b32 v21, v21, v22", [21], [21, 22])
    a.valu("v_lshlrev_b32 v21, 4, v21", [21], [21])
    a.valu("v_and_b32 v20, 1, v20", [20], [20])
    a.valu("v_lshlrev_b32 v20, 3, v20", [20], [20])
    a.valu("v_or_b32 v21, v21, v20", [21], [21, 20])
    a.valu("v_lshlrev_b32 v22, 2, v17", [22], [17])
    a.valu("v_add_u32 v22, v22, v19", [22], [22, 19])
    a.valu("v_lshlrev_b32 v22, 8, v22", [22], [22])
    a.valu("v_add_u32 v21, v21, v22", [21], [21, 22])
    a.valu("v_add_u32 v21, 0x%x, v21" % VRING, [21], [21])
    for u in range(4):
        for aa in range(2):
            d = VADDR + 2 * u + aa
            a.valu("v_xor_b32 v%d, 0x%x, v21" % (d, (4 * u + 2 * aa) << 4), [d], [21])
    a.valu("v_and_b32 v18, 15, v16", [18], [16])
    a.valu("v_lshlrev_b32 v19, 3, v17", [19], [17])
    a.valu("v_xor_b32 v18, v18, v19", [18], [18, 19])
    a.valu("v_lshlrev_b32 v18, 4, v18", [18], [18])
    a.valu("v_lshlrev_b32 v19, 8, v16", [19], [16])
    a.valu("v_add_u32 v15, v18, v19", [15], [18, 19])
    for e in range(8):
        d = KADDR + e
        a.valu("v_xor_b32 v%d, 0x%x, v15" % (d, e << 4), [d], [15])
    stamp(a, "preB0")
    a.barrier()
    stamp(a, "B0")
    if not EARLYQ:
        for s in range(NST):
            proj_loads(a, 'q', s)
    proj_phase(a, 'q')
    for i in range(4):
        for nq in range(2):
            for p in range(4):
                t0 = OACC + (2 * (2 * p) + nq) * 4 + i
                t1 = OACC + (2 * (2 * p + 1) + nq) * 4 + i
                d = QF + 4 * (4 * nq + i) + p
                a.valu("v_mul_f32 v%d, s%d, v%d" % (t0, S_C, t0), [t0], [t0])
                a.valu("v_mul_f32 v%d, s%d, v%d" % (t1, S_C, t1), [t1], [t1])
                a.valu("v_cvt_pk_bf16_f32 v%d, v%d, v%d" % (d, t0, t1), [d], [t0, t1])
    for i in range(4):
        for p in range(4):
            da = QF + 4 * i + p
            db = QF + 4 * (4 + i) + p
            a.ins("perml", "v_permlane16_swap_b32 v%d, v%d" % (da, db), rd=[da, db], wr=[da, db])
    stamp(a, "ph1")
    run_phase2(a)
    for s in range(NST):
        proj_loads(a, 'o', s)
    a.valu("v_add_f32 v%d, v%d, v%d" % (V_L, V_SUM[0], V_SUM[1]), [V_L], [V_SUM[0], V_SUM[1]])
    a.valu("v_add_f32 v%d, v%d, v%d" % (V_T1, V_SUM[2], V_SUM[3]), [V_T1], [V_SUM[2], V_SUM[3]])
    a.valu("v_add_f32 v%d, v%d, v%d" % (V_L, V_L, V_T1), [V_L], [V_L, V_T1])
    a.valu("v_mov_b32 v%d, v%d" % (V_T1, V_L), [V_T1], [V_L])
    a.ins("perml", "v_permlane32_swap_b32 v%d, v%d" % (V_L, V_T1), rd=[V_L, V_T1], wr=[V_L, V_T1])
    a.valu("v_add_f32 v%d, v%d, v%d" % (V_L, V_L, V_T1), [V_L], [V_L, V_T1])
    a.trans("v_rcp_f32 v%d, v%d" % (V_L, V_L), [V_L], [V_L])
    for u in range(4):
        for t in range(2):
            for p in range(4):
                r0 = OACC + 16 * u + 8 * t + 2 * p
                a.valu("v_mul_f32 v%d, v%d, v%d" % (r0, r0, V_L), [r0], [r0, V_L])
                a.valu("v_mul_f32 v%d, v%d, v%d" % (r0 + 1, r0 + 1, V_L), [r0 + 1], [r0 + 1, V_L])
            for p in range(4):
                r0 = OACC + 16 * u + 8 * t + 2 * p
                d = QF + 4 * (2 * u + t) + p
                a.valu("v_cvt_pk_bf16_f32 v%d, v%d, v%d" % (d, r0, r0 + 1), [d], [r0, r0 + 1])
            d = QF + 4 * (2 * u + t)
            a.ins("dsw", "ds_write_b128 v%d, v[%d:%d] offset:%d" % (V_XOW, d, d + 3, u * 2048 + t * 512), rd=[V_XOW] + R(d, 4))
    a.wait_lg(0)
    a.barrier()
    stamp(a, "B11")
    proj_phase(a, 'o')
    for j in range(4):
        for g in range(4):
            d = OACC + (4 * j + g) * 4
            off = (" offset:%d" % (g * 1024)) if g else ""
            a.ins("vst", "buffer_store_dwordx4 v[%d:%d], v%d, s[%d:%d], s%d offen%s" % (d, d + 3, V_ST, SRD_WS, SRD_WS + 3, S_ST + j, off),
                  rd=[V_ST] + R(d, 4), wide_store=True)
    stamp(a, "ph3")
    stamp_flush(a)
    a.raw("s_endpgm")

def kernel1():
    out = []
    a = Asm()
    a.label(K1)
    if PROF:
        a.raw("s_memrealtime s[96:97]")
    a.raw("s_cmp_ge_u32 s2, 256")
    a.raw("s_cbranch_scc1 L_k1_end")
    a.raw("s_load_dwordx16 s[16:31], s[0:1], 0")
    a.valu("v_and_b32 v1, 63, v0", [1], [0])
    a.valu("v_lshrrev_b32 v2, 6, v0", [2], [0])
    a.ins("rfl", "v_readfirstlane_b32 s3, v2", rd=[2], swr=["s3"])
    a.salu("s_and_b32 s4, s2, 7")
    a.salu("s_lshr_b32 s5, s2, 3")
    a.salu("s_mov_b32 s%d, 0x05040100" % S_SELLO)
    a.salu("s_mov_b32 s%d, 0x07060302" % S_SELHI)
    a.salu("s_mov_b32 s%d, 0x%08x" % (S_C, f32bits(CSCALE)))
    a.salu("s_mov_b32 s%d, 0x%08x" % (S_TAU, f32bits(TAU)))
    a.salu("s_mov_b32 s%d, 0x3f803f80" % S_ONES)
    a.salu("s_mov_b64 s[%d:%d], 0" % (S_FLAG, S_FLAG + 1))
    a.raw("s_waitcnt lgkmcnt(0)")
    srd(a, 16, SRD_X, 0x100000)
    srd(a, 18, SRD_K, 0x2000000)
    srd(a, 20, SRD_V, 0x2000000)
    srd(a, 22, SRD_WQ, 0x400000)
    srd(a, 24, SRD_WO, 0x400000)
    srd(a, 30, SRD_WS, 0x1010000 if PROF else 0x1000000)
    a.raw("s_nop 4")
    a.raw("s_cmp_eq_u32 s3, 4")
    a.raw("s_cbranch_scc1 L_kprod")
    a.raw("s_cmp_eq_u32 s3, 5")
    a.raw("s_cbranch_scc1 L_vprod")
    out.append(a.text())
    c = Asm(); consumer(c); out.append(c.text())
    sys.stderr.write("consumer: %d slots, %d nop states\n" % (c.slot, c.nops))
    p = Asm(); p.label("L_kprod"); producer(p, True); out.append(p.text())
    p = Asm(); p.label("L_vprod"); producer(p, False); out.append(p.text())
    out.append("L_k1_end:\n    s_endpgm\n")
    return "".join(out)

def kernel2():
    a = Asm()
    a.label(K2)
    a.raw("s_cmp_ge_u32 s2, 256")
    a.raw("s_cbranch_scc1 L_k2_end")
    a.raw("s_load_dwordx2 s[16:17], s[0:1], 40")
    a.raw("s_load_dwordx2 s[18:19], s[0:1], 56")
    a.valu("v_and_b32 v1, 63, v0", [1], [0])
    a.valu("v_lshrrev_b32 v2, 6, v0", [2], [0])
    a.ins("rfl", "v_readfirstlane_b32 s3, v2", rd=[2], swr=["s3"])
    a.salu("s_lshr_b32 s5, s2, 3")
    a.salu("s_lshr_b32 s6, s2, 1")
    a.salu("s_and_b32 s6, s6, 3")
    a.salu("s_and_b32 s7, s2, 1")
    a.valu("v_lshlrev_b32 v3, 4, v1", [3], [1])
    a.valu("v_add_u32 v4, 0x1000, v3", [4], [3])
    a.valu("v_add_u32 v5, 0x2000, v3", [5], [3])
    a.valu("v_add_u32 v6, 0x3000, v3", [6], [3])
    a.salu("s_lshl_b32 s8, s5, 19")
    a.salu("s_lshl_b32 s9, s6, 14")
    a.salu("s_add_u32 s8, s8, s9")
    a.salu("s_lshl_b32 s9, s7, 10")
    a.salu("s_add_u32 s8, s8, s9")
    a.salu("s_lshl_b32 s9, s3, 17")
    a.salu("s_add_u32 s8, s8, s9")
    a.salu("s_add_u32 s9, s8, 0x10000")
    a.valu("v_and_b32 v8, 15, v1", [8], [1])
    a.valu("v_lshlrev_b32 v8, 10, v8", [8], [8])
    a.valu("v_lshrrev_b32 v9, 4, v1", [9], [1])
    a.valu("v_lshlrev_b32 v9, 6, v9", [9], [9])
    a.valu("v_add_u32 v8, v8, v9", [8], [8, 9])
    a.salu("s_lshl_b32 s10, s5, 15")
    a.salu("s_lshl_b32 s11, s6, 8")
    a.salu("s_add_u32 s10, s10, s11")
    a.salu("s_lshl_b32 s11, s7, 14")
    a.salu("s_add_u32 s10, s10, s11")
    a.salu("s_lshl_b32 s12, s3, 13")
    a.salu("s_sub_u32 s12, s12, 0x2000")
    a.valu("v_add_u32 v10, s12, v3", [10], [3])
    a.raw("s_waitcnt lgkmcnt(0)")
    srd(a, 16, 20, 0x100000)
    srd(a, 18, 24, 0x1000000)
    base = 16
    for hk in range(2):
        for j in range(8):
            d = base + (hk * 8 + j) * 4
            off = " offset:2048" if (j & 1) else ""
            a.ins("vld", "buffer_load_dwordx4 v[%d:%d], v%d, s[24:27], s%d offen%s" % (d, d + 3, 3 + (j >> 1), 8 + hk, off), rd=[3 + (j >> 1)], wr=R(d, 4))
    for k in range(32):
        a.valu("v_add_f32 v%d, v%d, v%d" % (base + k, base + k, base + 32 + k), [base + k], [base + k, base + 32 + k])
    a.raw("s_cmp_eq_u32 s3, 0")
    a.raw("s_cbranch_scc1 L_k2_w0")
    b = Asm(); b.slot = 1000
    for j in range(8):
        d = base + 4 * j
        b.ins("dsw", "ds_write_b128 v10, v[%d:%d] offset:%d" % (d, d + 3, j * 1024), rd=[10] + R(d, 4))
    b.wait_lg(0)
    b.barrier()
    b.raw("s_endpgm")
    c = Asm(); c.label("L_k2_w0")
    c.barrier()
    for v in range(3):
        for j in range(8):
            d = 64 + (v * 8 + j) * 4
            c.ins("dsr", "ds_read_b128 v[%d:%d], v3 offset:%d" % (d, d + 3, v * 8192 + j * 1024), rd=[3], wr=R(d, 4))
    for v in range(3):
        for k in range(32):
            c.valu("v_add_f32 v%d, v%d, v%d" % (base + k, base + k, 64 + v * 32 + k), [base + k], [base + k, 64 + v * 32 + k])
    o = 160
    for i in range(4):
        for pr in range(4):
            d = o + 4 * i + pr
            x0 = base + (2 * pr) * 4 + i
            x1 = base + (2 * pr + 1) * 4 + i
            c.valu("v_cvt_pk_bf16_f32 v%d, v%d, v%d" % (d, x0, x1), [d], [x0, x1])
    for i in range(4):
        off = (" offset:%d" % (16 * i)) if i else ""
        c.ins("vst", "buffer_store_dwordx4 v[%d:%d], v8, s[20:23], s10 offen%s" % (o + 4 * i, o + 4 * i + 3, off), rd=[8] + R(o + 4 * i, 4), wide_store=True)
    c.label("L_k2_end")
    c.raw("s_endpgm")
    return a.text() + b.text() + c.text()

def desc(name, nv, ns=102):
    return """.amdhsa_kernel %s
  .amdhsa_next_free_vgpr %d
  .amdhsa_next_free_sgpr %d
  .amdhsa_accum_offset %d
  .amdhsa_group_segment_fixed_size 0
  .amdhsa_kernarg_size 64
  .amdhsa_user_sgpr_count 2
  .amdhsa_user_sgpr_kernarg_segment_ptr 1
  .amdhsa_system_sgpr_workgroup_id_x 1
.end_amdhsa_kernel
""" % (name, nv, ns, nv)

def main(path):
    hdr = """; Kernarg layout for this problem (64 bytes, ptrs only, base s[0:1]):
;   offset   0: x   8: k_cache  16: v_cache  24: wq  32: wo  40: d_out  48: d_debug  56: d_ws
; @launch kernel=%s grid=(256,1,1) block=(384,1,1) lds=%d
; @launch kernel=%s grid=(256,1,1) block=(256,1,1) lds=24576
.amdgcn_target "amdgcn-amd-amdhsa--gfx950"
.text
""" % (K1, LDS_BYTES, K2)
    s = hdr
    for nm, body in ((K1, kernel1()), (K2, kernel2())):
        s += ".globl %s\n.p2align 8\n.type %s,@function\n" % (nm, nm) + body
    s += '.section .rodata,"a"\n.p2align 6\n' + desc(K1, 256) + ".p2align 6\n" + desc(K2, 192)
    open(path, "w").write(s)

if __name__ == "__main__":
    main(sys.argv[1] if len(sys.argv) > 1 else "cdna_kernels/%s.s" % NAME)
```

```python
import sys, struct, math
sys.path.insert(0, "work")
from asmlib import Asm, R

NAME = "standalone__gqa_block_cached__near_ridge"
K1 = NAME + "_kernel"
K2 = "reduce_kernel"

KRING = 0
VRING = 65536
XO = 131072
LDS_BYTES = 163840

SRD_X, SRD_K, SRD_V, SRD_WQ, SRD_WO, SRD_WS = 32, 36, 40, 44, 48, 52
S_SELLO, S_SELHI, S_C = 56, 57, 58
S_ROW = 60
S_WOOFF = 68
S_ST = 70
S_T0 = 76
S_TAU = 59
S_FLAG = 74
TAU = 8.0

def f32bits(x):
    return struct.unpack("<I", struct.pack("<f", x))[0]

CSCALE = (128.0 ** -0.5) * math.log2(math.e)
import os
PROF = int(os.environ.get("PROF", "0"))
VAR_A = int(os.environ.get("VAR_A", "0"))
EARLYQ = int(os.environ.get("EARLYQ", "0"))
PPRIO = int(os.environ.get("PPRIO", "0"))
_stamp = [0]
PST = os.environ.get("PST", "preB0,B0,ph1,it-1,it8,B11,ph3").split(",")
def stamp(a, name):
    if not PROF or name not in PST:
        return
    k = _stamp[0]; _stamp[0] += 1
    assert k < 8
    a.raw("s_memrealtime s[%d:%d]" % (80 + 2 * k, 81 + 2 * k))
def stamp_flush(a):
    if not PROF:
        return
    a.raw("s_cmp_lg_u32 s3, 0")
    a.raw("s_cbranch_scc1 L_noflush")
    a.raw("s_waitcnt vmcnt(0)")
    a.raw("s_memrealtime s[98:99]")
    a.raw("s_waitcnt lgkmcnt(0)")
    a.salu("s_lshl_b32 s76, s2, 8")
    a.salu("s_add_u32 s76, s76, 0x1000000")
    a.valu("v_mov_b32 v253, 0", [253], [])
    for k in list(range(_stamp[0])) + [8, 9]:
        a.valu("v_mov_b32 v252, s%d" % (80 + 2 * k), [252], [])
        a.ins("vst", "buffer_store_dword v252, v253, s[%d:%d], s76 offen offset:%d" % (SRD_WS, SRD_WS + 3, 4 * k), rd=[252, 253])
        a.raw("s_waitcnt vmcnt(0)")
    a.label("L_noflush")

def srd(a, base_lo, dst, size):
    a.salu("s_mov_b32 s%d, s%d" % (dst, base_lo))
    a.salu("s_and_b32 s%d, s%d, 0xffff" % (dst + 1, base_lo + 1))
    a.salu("s_mov_b32 s%d, 0x%x" % (dst + 2, size))
    a.salu("s_mov_b32 s%d, 0x00020000" % (dst + 3))

def producer(a, is_k):
    ring = KRING if is_k else VRING
    if PPRIO:
        a.raw("s_setprio %d" % PPRIO)
    sr = SRD_K if is_k else SRD_V
    a.valu("v_and_b32 v3, 15, v1", [3], [1])
    a.valu("v_lshlrev_b32 v2, 10, v3", [2], [3])
    a.valu("v_lshrrev_b32 v3, 4, v1", [3], [1])
    a.valu("v_lshlrev_b32 v3, 4, v3", [3], [3])
    a.valu("v_add_u32 v2, v2, v3", [2], [2, 3])
    a.valu("v_lshrrev_b32 v8, 4, v1", [8], [1])
    a.valu("v_and_b32 v9, 15, v1", [9], [1])
    a.valu("v_lshlrev_b32 v10, 8, v8", [10], [8])
    for ii in range(4):
        if is_k:
            a.valu("v_add_u32 v11, %d, v8" % (4 * ii), [11], [8])
        else:
            a.valu("v_lshlrev_b32 v11, 2, v8", [11], [8])
            a.valu("v_or_b32 v11, %d, v11" % ii, [11], [11])
        a.valu("v_xor_b32 v11, v9, v11", [11], [9, 11])
        a.valu("v_lshlrev_b32 v11, 4, v11", [11], [11])
        a.valu("v_add_u32 v%d, v10, v11" % (4 + ii), [4 + ii], [10, 11])
    a.salu("s_lshl_b32 s76, s5, 15")
    a.salu("s_lshl_b32 s77, s2, 17")
    s0 = 0 if is_k else 16
    for s in range(s0, s0 + 16):
        a.salu("s_add_u32 s78, s76, %d" % ((s >> 1) * 64 + (s & 1) * 16384))
        a.salu("s_mov_b32 m0, %d" % (XO + s * 1024), swr=["m0"])
        a.ins("dma", "buffer_load_dwordx4 v2, s[%d:%d], s78 offen lds" % (SRD_X, SRD_X + 3), rd=[2], uses_m0=True)

    a.valu("v_lshlrev_b32 v12, 4, v1", [12], [1])
    a.salu("s_lshl_b32 s79, s5, 17")
    a.salu("s_lshl_b32 s78, s4, 10")
    a.salu("s_add_u32 s79, s79, s78")
    for r in range(8):
        rr = r if is_k else r + 8
        a.salu("s_add_u32 s78, s79, %d" % (rr * 8192))
        d = 32 + 4 * r
        a.ins("vld", "buffer_load_dwordx4 v[%d:%d], v12, s[%d:%d], s78 offen" % (d, d + 3, SRD_WQ, SRD_WQ + 3), rd=[12], wr=R(d, 4))

    def wo_prefetch():
        a.salu("s_lshl_b32 s79, s4, 19")
        a.salu("s_lshl_b32 s78, s5, 14")
        a.salu("s_add_u32 s79, s79, s78")
        for r in range(16):
            a.salu("s_add_u32 s78, s79, %d" % (r * 1024))
            d = 64 + 4 * r
            a.ins("vld", "buffer_load_dwordx4 v[%d:%d], v12, s[%d:%d], s78 offen" % (d, d + 3, SRD_WO, SRD_WO + 3), rd=[12], wr=R(d, 4))

    def tile(j):
        if j == 4:
            lbase = XO + (0 if is_k else 16384)
        else:
            lbase = ring + (j if j < 4 else j - 5) * 16384
        for g in range(4):
            a.salu("s_add_u32 s78, s77, %d" % (j * 16384 + g * 4096))
            a.salu("s_mov_b32 m0, %d" % (lbase + g * 4096), swr=["m0"])
            for ii in range(4):
                off = (" offset:%d" % (ii * 1024)) if ii else ""
                a.ins("dma", "buffer_load_dwordx4 v%d, s[%d:%d], s78 offen%s nt lds" % (4 + ii, sr, sr + 3, off),
                      rd=[4 + ii], uses_m0=True)

    pst = [-int(os.environ.get("PSKIP", "0"))]
    def B():
        if PROF and pst[0] < 8:
            k = pst[0]; pst[0] += 1
            if k >= 0:
                a.raw("s_memrealtime s[%d:%d]" % (80 + 2 * k, 81 + 2 * k))
        a.barrier()
    W = a.wait_vm
    if is_k:
        tile(0); tile(1); W(32); B()
        tile(2); tile(3); W(32); B()
        tile(4); B()
        tile(5); W(48); B()
        tile(6); W(48); B()
        tile(7); W(48); B()
        wo_prefetch(); W(48); B()
        W(32); B()
        W(16); B()
        W(0)
    else:
        tile(0); tile(1); W(32); B()
        tile(2); tile(3); W(32); B()
        tile(4); B()
        B()
        W(32); B()
        tile(5); W(32); B()
        tile(6); W(32); B()
        tile(7); W(32); B()
        W(16); B()
        W(0); B()
    if PROF:
        a.raw("s_waitcnt lgkmcnt(0)")
        a.salu("s_lshl_b32 s76, s2, 8")
        a.salu("s_add_u32 s76, s76, 0x1000000")
        a.valu("v_mov_b32 v253, 0", [253], [])
        for k in range(8):
            a.valu("v_mov_b32 v252, s%d" % (80 + 2 * k), [252], [])
            a.ins("vst", "buffer_store_dword v252, v253, s[%d:%d], s76 offen offset:%d" % (SRD_WS, SRD_WS + 3, (64 if is_k else 128) + 4 * k), rd=[252, 253])
            a.raw("s_waitcnt vmcnt(0)")
    a.raw("s_endpgm")

V_WQOFF = 2
V_WOOFF = 3
V_XO = 5
V_XOW = 14
V_L = 8
V_ALPHA = 9
V_T0, V_T1 = 10, 15
V_M = [6, 12]
V_MC = [7, 11]
V_SUM = [248, 249, 250, 251]
V_ST = 13
KADDR = 16
VADDR = 24
QF = 32
OACC = 64
SBUF = 128
FRAG = 192
LBUF = 128
NST = 3
AFR = 224
BFR = 32

def proj_phase(a, which):
    def perms(s, j):
        buf = LBUF + (s % NST) * 32
        sel = S_SELLO if (j & 1) == 0 else S_SELHI
        q = j >> 1
        for p in range(4):
            lo = buf + (2 * p) * 4 + q
            hi = buf + (2 * p + 1) * 4 + q
            d = AFR + 4 * j + p
            a.valu("v_perm_b32 v%d, v%d, v%d, s%d" % (d, hi, lo, sel), [d], [hi, lo])
    def bread(s):
        for nq in range(2):
            d = BFR + (s & 1) * 8 + 4 * nq
            a.ins("dsr", "ds_read_b128 v[%d:%d], v%d offset:%d" % (d, d + 3, V_XO, (2 * s + nq) * 1024), rd=[V_XO], wr=R(d, 4))
    bread(0)
    bread(1)
    for j in range(8):
        perms(0, j)
    for s in range(16):
        for j in range(8):
            for nq in range(2):
                a.mfma16(OACC + (2 * j + nq) * 4, AFR + 4 * j, BFR + (s & 1) * 8 + 4 * nq, zero=(s == 0))
            if j == 7 and s + 2 < 16:
                bread(s + 2)
            if s + 1 < 16:
                perms(s + 1, j)
            if s + NST < 16:
                proj_load1(a, which, s + NST, j)

def proj_load1(a, which, s, r):
    buf = LBUF + (s % NST) * 32
    d = buf + 4 * r
    if which == 'q':
        a.ins("vld", "buffer_load_dwordx4 v[%d:%d], v%d, s[%d:%d], s%d offen" % (d, d + 3, V_WQOFF, SRD_WQ, SRD_WQ + 3, S_ROW + r),
              rd=[V_WQOFF], wr=R(d, 4))
        a.salu("s_add_u32 s%d, s%d, 0x40000" % (S_ROW + r, S_ROW + r))
    else:
        aa, rr = r >> 2, r & 3
        off = (" offset:%d" % (rr * 1024)) if rr else ""
        a.ins("vld", "buffer_load_dwordx4 v[%d:%d], v%d, s[%d:%d], s%d offen%s" % (d, d + 3, V_WOOFF + aa, SRD_WO, SRD_WO + 3, S_WOOFF, off),
              rd=[V_WOOFF + aa], wr=R(d, 4))
        if r == 7:
            a.salu("s_add_u32 s%d, s%d, 0x8000" % (S_WOOFF, S_WOOFF))

def proj_loads(a, which, s):
    for r in range(8):
        proj_load1(a, which, s, r)

def softmax_items(i):
    it = []
    sb = SBUF + 32 * (i & 1)
    m_old, m_new = V_M[(i + 1) & 1], V_M[i & 1]
    mc_old, mc_new = V_MC[(i + 1) & 1], V_MC[i & 1]
    def add(cost, fn, after=-1):
        it.append((cost, after, fn))
    def v(text, wr, rd, cost=4, after=-1):
        add(cost, lambda a: a.valu(text, wr, rd), after)
    def tr(text, wr, rd):
        add(8, lambda a: a.trans(text, wr, rd))
    tA, tB = V_T0, V_T1
    chains = []
    for (t, base) in ((tA, sb), (tB, sb + 16)):
        c = [("v_max3_f32 v%d, v%d, v%d, v%d" % (t, base, base + 1, base + 2), [t], [base, base + 1, base + 2])]
        for k in range(3, 15, 2):
            c.append(("v_max3_f32 v%d, v%d, v%d, v%d" % (t, t, base + k, base + k + 1), [t], [t, base + k, base + k + 1]))
        chains.append(c)
    for x, y in zip(*chains):
        v(*x); v(*y)
    v("v_max3_f32 v%d, v%d, v%d, v%d" % (tA, tA, sb + 15, sb + 31), [tA], [tA, sb + 15, sb + 31])
    v("v_max_f32 v%d, v%d, v%d" % (tA, tA, tB), [tA], [tA, tB])
    v("v_mov_b32 v%d, v%d" % (tB, tA), [tB], [tA])
    add(4, lambda a: a.ins("perml", "v_permlane32_swap_b32 v%d, v%d" % (tA, tB), rd=[tA, tB], wr=[tA, tB]))
    if i == 0:
        v("v_max_f32 v%d, v%d, v%d" % (m_new, tA, tB), [m_new], [tA, tB])
        v("v_mul_f32 v%d, s%d, v%d" % (mc_new, S_C, m_new), [mc_new], [m_new])
    else:
        v("v_max_f32 v%d, v%d, v%d" % (tA, tA, tB), [tA], [tA, tB])
        v("v_mul_f32 v%d, s%d, v%d" % (tA, S_C, tA), [tA], [tA])
        v("v_sub_f32 v%d, v%d, v%d" % (tB, tA, mc_old), [tB], [tA, mc_old])
        add(4, lambda a: a.ins("valu", "v_cmp_lt_f32 vcc, s%d, v%d" % (S_TAU, tB), rd=[tB], swr=["vcc"]))
        add(4, lambda a: a.ins("valu", "v_cndmask_b32 v%d, v%d, v%d, vcc" % (mc_new, mc_old, tA), rd=[mc_old, tA], wr=[mc_new], srd=["vcc"]))
        add(4, lambda a: a.salu("s_mov_b64 s[%d:%d], vcc" % (S_FLAG, S_FLAG + 1)))
        v("v_sub_f32 v%d, v%d, v%d" % (V_ALPHA, mc_old, mc_new), [V_ALPHA], [mc_old, mc_new])
        tr("v_exp_f32 v%d, v%d" % (V_ALPHA, V_ALPHA), [V_ALPHA], [V_ALPHA])
    nsum = len(V_SUM)
    started = [False] * nsum
    pend = {}
    for g in range(4):
        b8 = sb + 8 * g
        for k in range(0, 8, 2):
            for kk in (k, k + 1):
                r = b8 + kk
                v("v_fma_f32 v%d, v%d, s%d, -v%d" % (r, r, S_C, mc_new), [r], [r, mc_new])
            for kk in (k, k + 1):
                r = b8 + kk
                tr("v_exp_f32 v%d, v%d" % (r, r), [r], [r])
        for k in range(8):
            r = b8 + k
            si = k % nsum
            sr = V_SUM[si]
            if not started[si]:
                if si not in pend:
                    pend[si] = r
                else:
                    r0 = pend.pop(si)
                    v("v_add_f32 v%d, v%d, v%d" % (sr, r0, r), [sr], [r0, r])
                    started[si] = True
            else:
                v("v_add_f32 v%d, v%d, v%d" % (sr, sr, r), [sr], [sr, r])
        assert not pend or g == 0
        if g == 0:
            assert not pend, pend
        for p in range(4):
            d = b8 + p
            v("v_cvt_pk_bf16_f32 v%d, v%d, v%d" % (d, b8 + 2 * p, b8 + 2 * p + 1), [d], [b8 + 2 * p, b8 + 2 * p + 1])
    v("v_add_f32 v%d, v%d, v%d" % (V_SUM[0], V_SUM[0], V_SUM[1]), [V_SUM[0]], [V_SUM[0], V_SUM[1]])
    v("v_add_f32 v%d, v%d, v%d" % (V_SUM[2], V_SUM[2], V_SUM[3]), [V_SUM[2]], [V_SUM[2], V_SUM[3]])
    if i > 0:
        v("v_fma_f32 v%d, v%d, v%d, v%d" % (V_L, V_L, V_ALPHA, V_SUM[0]), [V_L], [V_L, V_ALPHA, V_SUM[0]])
        v("v_add_f32 v%d, v%d, v%d" % (V_L, V_L, V_SUM[2]), [V_L], [V_L, V_SUM[2]])
    else:
        v("v_add_f32 v%d, v%d, v%d" % (V_L, V_SUM[0], V_SUM[2]), [V_L], [V_SUM[0], V_SUM[2]])
    return it

frag_ctr = [0]

def iter_items(i):
    M = []
    if 1 <= i <= 8:
        j = i - 1
        slot = 0 if j == 4 else (j if j < 4 else j - 5)
        far = (XO + 16384 - VRING) if j == 4 else 0
        pb = SBUF + 32 * (j & 1)
        for t in range(4):
            for u in range(4):
                f = FRAG + 4 * (frag_ctr[0] % 8); frag_ctr[0] += 1
                def ld(a, f=f, u=u, t=t, slot=slot, far=far):
                    for aa in range(2):
                        va = VADDR + 2 * u + aa
                        if far and t == 0:
                            a.valu("v_add_u32 v%d, 0x%x, v%d" % (va, far, va), [va], [va])
                        a.ins("dsr", "ds_read_b64_tr_b16 v[%d:%d], v%d offset:%d" % (f + 2 * aa, f + 2 * aa + 1, va, slot * 16384 + t * 4096 + aa * 2048),
                              rd=[va], wr=[f + 2 * aa, f + 2 * aa + 1])
                        if far and t == 3:
                            a.valu("v_subrev_u32 v%d, 0x%x, v%d" % (va, far, va), [va], [va])
                pf = pb + 16 * (t >> 1) + 8 * (t & 1)
                def mm(a, f=f, u=u, pf=pf, z=(j == 0 and t == 0)):
                    a.mfma(OACC + 16 * u, f, pf, zero=z)
                M.append((ld, mm, 8))
    if -1 <= i <= 6:
        j = i + 1
        slot = 0 if j == 4 else (j if j < 4 else j - 5)
        far = (XO - KRING) if j == 4 else 0
        sb = SBUF + 32 * (j & 1)
        for tt in range(2):
            for ez in range(8):
                f = FRAG + 4 * (frag_ctr[0] % 8); frag_ctr[0] += 1
                def ld(a, f=f, ez=ez, tt=tt, slot=slot, far=far):
                    ka = KADDR + ez
                    if far and tt == 0:
                        a.valu("v_add_u32 v%d, 0x%x, v%d" % (ka, far, ka), [ka], [ka])
                    a.ins("dsr", "ds_read_b128 v[%d:%d], v%d offset:%d" % (f, f + 3, ka, slot * 16384 + tt * 8192),
                          rd=[ka], wr=R(f, 4))
                    if far and tt == 1:
                        a.valu("v_subrev_u32 v%d, 0x%x, v%d" % (ka, far, ka), [ka], [ka])
                def mm(a, f=f, ez=ez, tt=tt, sb=sb):
                    a.mfma(sb + 16 * tt, f, QF + 4 * ez, zero=(ez == 0))
                M.append((ld, mm, 4))
    return M

DPRE = 5

def run_phase2(a):
    import copy
    its = list(range(-1, 9))
    Ms = {i: iter_items(i) for i in its}
    flat = [(i, n) for i in its for n in range(len(Ms[i]))]
    pos = {k: idx for idx, k in enumerate(flat)}
    issued = [0]
    def load_upto(idx):
        while issued[0] <= idx and issued[0] < len(flat):
            i, n = flat[issued[0]]
            Ms[i][n][0](a)
            issued[0] += 1
    for i in its:
        a.barrier()
        stamp(a, "it%d" % i)
        a.comment("---- iteration %d" % i)
        M = Ms[i]
        V = softmax_items(i) if 0 <= i <= 7 else []
        nM = len(M)
        tot = sum(x[0] for x in V)
        vi = 0; cum = 0
        if i == -1:
            load_upto(DPRE - 1)
        for n in range(nM):
            M[n][1](a)
            load_upto(pos[(i, n)] + DPRE)
            target = tot * (n + 1) / (nM - 1)
            while vi < len(V) and cum + V[vi][0] / 2 <= target:
                V[vi][2](a); cum += V[vi][0]; vi += 1
        while vi < len(V):
            V[vi][2](a); vi += 1
        if 1 <= i <= 7:
            a.raw("s_cmp_lg_u64 s[%d:%d], 0" % (S_FLAG, S_FLAG + 1))
            a.raw("s_cbranch_scc0 L_noresc%d" % i)
            saved = (a.slot, dict(a.w_valu), dict(a.w_trans), dict(a.w_mfma), list(a.vm), list(a.lg))
            for r in range(OACC, OACC + 64):
                a.valu("v_mul_f32 v%d, v%d, v%d" % (r, r, V_ALPHA), [r], [r, V_ALPHA])
            assert a.vm == saved[4] and a.lg == saved[5]
            a.raw("s_nop 1")
            a.label("L_noresc%d" % i)
            a.slot, a.w_valu, a.w_trans, a.w_mfma = saved[0], saved[1], saved[2], saved[3]

def consumer(a):
    a.valu("v_and_b32 v16, 31, v1", [16], [1])
    a.valu("v_lshrrev_b32 v17, 5, v1", [17], [1])
    a.salu("s_lshl_b32 s76, s4, 2")
    a.salu("s_add_u32 s76, s76, s3")
    a.salu("s_lshl_b32 s76, s76, 8")
    a.valu("v_lshrrev_b32 v19, 4, v1", [19], [1])
    a.valu("v_lshlrev_b32 v2, 16, v19", [2], [19])
    a.valu("v_and_b32 v18, 15, v1", [18], [1])
    a.valu("v_lshlrev_b32 v18, 4, v18", [18], [18])
    a.valu("v_add_u32 v2, v2, v18", [2], [2, 18])
    a.valu("v_add_u32 v2, s76, v2", [2], [2])
    for r in range(8):
        a.salu("s_mov_b32 s%d, %d" % (S_ROW + r, r * 8192))
    if EARLYQ:
        for s in range(NST):
            proj_loads(a, 'q', s)
    a.salu("s_lshl_b32 s76, s3, 8")
    a.valu("v_lshlrev_b32 v3, 14, v17", [3], [17])
    a.valu("v_and_b32 v20, 1, v19", [20], [19])
    a.valu("v_lshlrev_b32 v20, 12, v20", [20], [20])
    a.valu("v_add_u32 v3, v3, v20", [3], [3, 20])
    a.valu("v_add_u32 v3, v3, v18", [3], [3, 18])
    a.valu("v_add_u32 v3, s76, v3", [3], [3])
    a.valu("v_add_u32 v4, 0x2000, v3", [4], [3])
    a.salu("s_lshl_b32 s%d, s4, 19" % S_WOOFF)
    a.valu("v_lshlrev_b32 v13, 4, v1", [13], [1])
    a.valu("v_add_u32 v5, 0x%x, v13" % XO, [5], [13])
    a.salu("s_lshl_b32 s76, s3, 13")
    a.salu("s_add_u32 s76, s76, 0x%x" % XO)
    a.valu("v_lshrrev_b32 v20, 4, v16", [20], [16])
    a.valu("v_lshlrev_b32 v20, 10, v20", [20], [20])
    a.valu("v_lshlrev_b32 v21, 8, v17", [21], [17])
    a.valu("v_add_u32 v20, v20, v21", [20], [20, 21])
    a.valu("v_add_u32 v20, v20, v18", [20], [20, 18])
    a.valu("v_add_u32 v14, s76, v20", [14], [20])
    a.salu("s_lshl_b32 s76, s2, 2")
    a.salu("s_add_u32 s76, s76, s3")
    a.salu("s_lshl_b32 s76, s76, 14")
    for j in range(4):
        a.salu("s_add_u32 s%d, s76, %d" % (S_ST + j, j * 4096))
    a.valu("v_lshrrev_b32 v18, 4, v1", [18], [1])
    a.valu("v_and_b32 v18, 1, v18", [18], [18])
    a.valu("v_lshrrev_b32 v19, 2, v1", [19], [1])
    a.valu("v_and_b32 v19, 3, v19", [19], [19])
    a.valu("v_and_b32 v20, 3, v1", [20], [1])
    a.valu("v_lshrrev_b32 v21, 1, v20", [21], [20])
    a.valu("v_xor_b32 v21, v21, v17", [21], [21, 17])
    a.valu("v_lshlrev_b32 v22, 2, v19", [22], [19])
    a.valu("v_or_b32 v21, v21, v22", [21], [21, 22])
    a.valu("v_lshlrev_b32 v22, 1, v18", [22], [18])
    a.valu("v_or_b32 v21, v21, v22", [21], [21, 22])
    a.valu("v_lshlrev_b32 v21, 4, v21", [21], [21])
    a.valu("v_and_b32 v20, 1, v20", [20], [20])
    a.valu("v_lshlrev_b32 v20, 3, v20", [20], [20])
    a.valu("v_or_b32 v21, v21, v20", [21], [21, 20])
    a.valu("v_lshlrev_b32 v22, 2, v17", [22], [17])
    a.valu("v_add_u32 v22, v22, v19", [22], [22, 19])
    a.valu("v_lshlrev_b32 v22, 8, v22", [22], [22])
    a.valu("v_add_u32 v21, v21, v22", [21], [21, 22])
    a.valu("v_add_u32 v21, 0x%x, v21" % VRING, [21], [21])
    for u in range(4):
        for aa in range(2):
            d = VADDR + 2 * u + aa
            a.valu("v_xor_b32 v%d, 0x%x, v21" % (d, (4 * u + 2 * aa) << 4), [d], [21])
    a.valu("v_and_b32 v18, 15, v16", [18], [16])
    a.valu("v_lshlrev_b32 v19, 3, v17", [19], [17])
    a.valu("v_xor_b32 v18, v18, v19", [18], [18, 19])
    a.valu("v_lshlrev_b32 v18, 4, v18", [18], [18])
    a.valu("v_lshlrev_b32 v19, 8, v16", [19], [16])
    a.valu("v_add_u32 v15, v18, v19", [15], [18, 19])
    for e in range(8):
        d = KADDR + e
        a.valu("v_xor_b32 v%d, 0x%x, v15" % (d, e << 4), [d], [15])
    stamp(a, "preB0")
    a.barrier()
    stamp(a, "B0")
    if not EARLYQ:
        for s in range(NST):
            proj_loads(a, 'q', s)
    proj_phase(a, 'q')
    for i in range(4):
        for nq in range(2):
            for p in range(4):
                t0 = OACC + (2 * (2 * p) + nq) * 4 + i
                t1 = OACC + (2 * (2 * p + 1) + nq) * 4 + i
                d = QF + 4 * (4 * nq + i) + p
                a.valu("v_cvt_pk_bf16_f32 v%d, v%d, v%d" % (d, t0, t1), [d], [t0, t1])
    for i in range(4):
        for p in range(4):
            da = QF + 4 * i + p
            db = QF + 4 * (4 + i) + p
            a.ins("perml", "v_permlane16_swap_b32 v%d, v%d" % (da, db), rd=[da, db], wr=[da, db])
    stamp(a, "ph1")
    run_phase2(a)
    for s in range(NST):
        proj_loads(a, 'o', s)
    a.valu("v_mov_b32 v%d, v%d" % (V_T1, V_L), [V_T1], [V_L])
    a.ins("perml", "v_permlane32_swap_b32 v%d, v%d" % (V_L, V_T1), rd=[V_L, V_T1], wr=[V_L, V_T1])
    a.valu("v_add_f32 v%d, v%d, v%d" % (V_L, V_L, V_T1), [V_L], [V_L, V_T1])
    a.trans("v_rcp_f32 v%d, v%d" % (V_L, V_L), [V_L], [V_L])
    for u in range(4):
        for t in range(2):
            for p in range(4):
                r0 = OACC + 16 * u + 8 * t + 2 * p
                a.valu("v_mul_f32 v%d, v%d, v%d" % (r0, r0, V_L), [r0], [r0, V_L])
                a.valu("v_mul_f32 v%d, v%d, v%d" % (r0 + 1, r0 + 1, V_L), [r0 + 1], [r0 + 1, V_L])
            for p in range(4):
                r0 = OACC + 16 * u + 8 * t + 2 * p
                d = QF + 4 * (2 * u + t) + p
                a.valu("v_cvt_pk_bf16_f32 v%d, v%d, v%d" % (d, r0, r0 + 1), [d], [r0, r0 + 1])
            d = QF + 4 * (2 * u + t)
            a.ins("dsw", "ds_write_b128 v%d, v[%d:%d] offset:%d" % (V_XOW, d, d + 3, u * 2048 + t * 512), rd=[V_XOW] + R(d, 4))
    a.wait_lg(0)
    a.barrier()
    stamp(a, "B11")
    proj_phase(a, 'o')
    for j in range(4):
        for g in range(4):
            d = OACC + (4 * j + g) * 4
            off = (" offset:%d" % (g * 1024)) if g else ""
            a.ins("vst", "buffer_store_dwordx4 v[%d:%d], v%d, s[%d:%d], s%d offen%s" % (d, d + 3, V_ST, SRD_WS, SRD_WS + 3, S_ST + j, off),
                  rd=[V_ST] + R(d, 4), wide_store=True)
    stamp(a, "ph3")
    stamp_flush(a)
    a.raw("s_endpgm")

def kernel1():
    out = []
    a = Asm()
    a.label(K1)
    if PROF:
        a.raw("s_memrealtime s[96:97]")
    a.raw("s_cmp_ge_u32 s2, 256")
    a.raw("s_cbranch_scc1 L_k1_end")
    a.raw("s_load_dwordx16 s[16:31], s[0:1], 0")
    a.valu("v_and_b32 v1, 63, v0", [1], [0])
    a.valu("v_lshrrev_b32 v2, 6, v0", [2], [0])
    a.ins("rfl", "v_readfirstlane_b32 s3, v2", rd=[2], swr=["s3"])
    a.salu("s_and_b32 s4, s2, 7")
    a.salu("s_lshr_b32 s5, s2, 3")
    a.salu("s_mov_b32 s%d, 0x05040100" % S_SELLO)
    a.salu("s_mov_b32 s%d, 0x07060302" % S_SELHI)
    a.salu("s_mov_b32 s%d, 0x%08x" % (S_C, f32bits(CSCALE)))
    a.salu("s_mov_b32 s%d, 0x%08x" % (S_TAU, f32bits(TAU)))
    a.raw("s_waitcnt lgkmcnt(0)")
    srd(a, 16, SRD_X, 0x100000)
    srd(a, 18, SRD_K, 0x2000000)
    srd(a, 20, SRD_V, 0x2000000)
    srd(a, 22, SRD_WQ, 0x400000)
    srd(a, 24, SRD_WO, 0x400000)
    srd(a, 30, SRD_WS, 0x1010000 if PROF else 0x1000000)
    a.raw("s_nop 4")
    a.raw("s_cmp_eq_u32 s3, 4")
    a.raw("s_cbranch_scc1 L_kprod")
    a.raw("s_cmp_eq_u32 s3, 5")
    a.raw("s_cbranch_scc1 L_vprod")
    out.append(a.text())
    c = Asm(); consumer(c); out.append(c.text())
    sys.stderr.write("consumer: %d slots, %d nop states\n" % (c.slot, c.nops))
    p = Asm(); p.label("L_kprod"); producer(p, True); out.append(p.text())
    p = Asm(); p.label("L_vprod"); producer(p, False); out.append(p.text())
    out.append("L_k1_end:\n    s_endpgm\n")
    return "".join(out)

def kernel2():
    a = Asm()
    a.label(K2)
    a.raw("s_cmp_ge_u32 s2, 256")
    a.raw("s_cbranch_scc1 L_k2_end")
    a.raw("s_load_dwordx2 s[16:17], s[0:1], 40")
    a.raw("s_load_dwordx2 s[18:19], s[0:1], 56")
    a.valu("v_and_b32 v1, 63, v0", [1], [0])
    a.valu("v_lshrrev_b32 v2, 6, v0", [2], [0])
    a.ins("rfl", "v_readfirstlane_b32 s3, v2", rd=[2], swr=["s3"])
    a.salu("s_lshr_b32 s5, s2, 3")
    a.salu("s_lshr_b32 s6, s2, 1")
    a.salu("s_and_b32 s6, s6, 3")
    a.salu("s_and_b32 s7, s2, 1")
    a.valu("v_lshlrev_b32 v3, 4, v1", [3], [1])
    a.valu("v_add_u32 v4, 0x1000, v3", [4], [3])
    a.valu("v_add_u32 v5, 0x2000, v3", [5], [3])
    a.valu("v_add_u32 v6, 0x3000, v3", [6], [3])
    a.salu("s_lshl_b32 s8, s5, 19")
    a.salu("s_lshl_b32 s9, s6, 14")
    a.salu("s_add_u32 s8, s8, s9")
    a.salu("s_lshl_b32 s9, s7, 10")
    a.salu("s_add_u32 s8, s8, s9")
    a.salu("s_lshl_b32 s9, s3, 17")
    a.salu("s_add_u32 s8, s8, s9")
    a.salu("s_add_u32 s9, s8, 0x10000")
    a.valu("v_and_b32 v8, 15, v1", [8], [1])
    a.valu("v_lshlrev_b32 v8, 10, v8", [8], [8])
    a.valu("v_lshrrev_b32 v9, 4, v1", [9], [1])
    a.valu("v_lshlrev_b32 v9, 6, v9", [9], [9])
    a.valu("v_add_u32 v8, v8, v9", [8], [8, 9])
    a.salu("s_lshl_b32 s10, s5, 15")
    a.salu("s_lshl_b32 s11, s6, 8")
    a.salu("s_add_u32 s10, s10, s11")
    a.salu("s_lshl_b32 s11, s7, 14")
    a.salu("s_add_u32 s10, s10, s11")
    a.salu("s_lshl_b32 s12, s3, 13")
    a.salu("s_sub_u32 s12, s12, 0x2000")
    a.valu("v_add_u32 v10, s12, v3", [10], [3])
    a.raw("s_waitcnt lgkmcnt(0)")
    srd(a, 16, 20, 0x100000)
    srd(a, 18, 24, 0x1000000)
    base = 16
    for hk in range(2):
        for j in range(8):
            d = base + (hk * 8 + j) * 4
            off = " offset:2048" if (j & 1) else ""
            a.ins("vld", "buffer_load_dwordx4 v[%d:%d], v%d, s[24:27], s%d offen%s" % (d, d + 3, 3 + (j >> 1), 8 + hk, off), rd=[3 + (j >> 1)], wr=R(d, 4))
    for k in range(32):
        a.valu("v_add_f32 v%d, v%d, v%d" % (base + k, base + k, base + 32 + k), [base + k], [base + k, base + 32 + k])
    a.raw("s_cmp_eq_u32 s3, 0")
    a.raw("s_cbranch_scc1 L_k2_w0")
    b = Asm(); b.slot = 1000
    for j in range(8):
        d = base + 4 * j
        b.ins("dsw", "ds_write_b128 v10, v[%d:%d] offset:%d" % (d, d + 3, j * 1024), rd=[10] + R(d, 4))
    b.wait_lg(0)
    b.barrier()
    b.raw("s_endpgm")
    c = Asm(); c.label("L_k2_w0")
    c.barrier()
    for v in range(3):
        for j in range(8):
            d = 64 + (v * 8 + j) * 4
            c.ins("dsr", "ds_read_b128 v[%d:%d], v3 offset:%d" % (d, d + 3, v * 8192 + j * 1024), rd=[3], wr=R(d, 4))
    for v in range(3):
        for k in range(32):
            c.valu("v_add_f32 v%d, v%d, v%d" % (base + k, base + k, 64 + v * 32 + k), [base + k], [base + k, 64 + v * 32 + k])
    o = 160
    for i in range(4):
        for pr in range(4):
            d = o + 4 * i + pr
            x0 = base + (2 * pr) * 4 + i
            x1 = base + (2 * pr + 1) * 4 + i
            c.valu("v_cvt_pk_bf16_f32 v%d, v%d, v%d" % (d, x0, x1), [d], [x0, x1])
    for i in range(4):
        off = (" offset:%d" % (16 * i)) if i else ""
        c.ins("vst", "buffer_store_dwordx4 v[%d:%d], v8, s[20:23], s10 offen%s" % (o + 4 * i, o + 4 * i + 3, off), rd=[8] + R(o + 4 * i, 4), wide_store=True)
    c.label("L_k2_end")
    c.raw("s_endpgm")
    return a.text() + b.text() + c.text()

def desc(name, nv, ns=102):
    return """.amdhsa_kernel %s
  .amdhsa_next_free_vgpr %d
  .amdhsa_next_free_sgpr %d
  .amdhsa_accum_offset %d
  .amdhsa_group_segment_fixed_size 0
  .amdhsa_kernarg_size 64
  .amdhsa_user_sgpr_count 2
  .amdhsa_user_sgpr_kernarg_segment_ptr 1
  .amdhsa_system_sgpr_workgroup_id_x 1
.end_amdhsa_kernel
""" % (name, nv, ns, nv)

def main(path):
    hdr = """; Kernarg layout for this problem (64 bytes, ptrs only, base s[0:1]):
;   offset   0: x   8: k_cache  16: v_cache  24: wq  32: wo  40: d_out  48: d_debug  56: d_ws
; @launch kernel=%s grid=(256,1,1) block=(384,1,1) lds=%d
; @launch kernel=%s grid=(256,1,1) block=(256,1,1) lds=24576
.amdgcn_target "amdgcn-amd-amdhsa--gfx950"
.text
""" % (K1, LDS_BYTES, K2)
    s = hdr
    for nm, body in ((K1, kernel1()), (K2, kernel2())):
        s += ".globl %s\n.p2align 8\n.type %s,@function\n" % (nm, nm) + body
    s += '.section .rodata,"a"\n.p2align 6\n' + desc(K1, 256) + ".p2align 6\n" + desc(K2, 192)
    open(path, "w").write(s)

if __name__ == "__main__":
    main(sys.argv[1] if len(sys.argv) > 1 else "cdna_kernels/%s.s" % NAME)
```

```python
import sys, struct, math
sys.path.insert(0, "work")
from asmlib import Asm, R

NAME = "standalone__gqa_block_cached__near_ridge"
K1 = NAME + "_kernel"
K2 = "reduce_kernel"

KRING = 0
VRING = 65536
XO = 131072
LDS_BYTES = 163840

SRD_X, SRD_K, SRD_V, SRD_WQ, SRD_WO, SRD_WS = 32, 36, 40, 44, 48, 52
S_SELLO, S_SELHI, S_C = 56, 57, 58
S_ROW = 60
S_WOOFF = 68
S_ST = 70
S_T0 = 76
S_TAU = 59
S_FLAG = 74
TAU = 8.0

def f32bits(x):
    return struct.unpack("<I", struct.pack("<f", x))[0]

CSCALE = (128.0 ** -0.5) * math.log2(math.e)
import os
PROF = int(os.environ.get("PROF", "0"))
VAR_A = int(os.environ.get("VAR_A", "0"))
EARLYQ = int(os.environ.get("EARLYQ", "0"))
PPRIO = int(os.environ.get("PPRIO", "0"))
_stamp = [0]
PST = os.environ.get("PST", "preB0,B0,ph1,it-1,it8,B11,ph3").split(",")
def stamp(a, name):
    if not PROF or name not in PST:
        return
    k = _stamp[0]; _stamp[0] += 1
    assert k < 8
    a.raw("%s s[%d:%d]" % ("s_memtime" if os.environ.get("PCYC") else "s_memrealtime", 80 + 2 * k, 81 + 2 * k))
def stamp_flush(a):
    if not PROF:
        return
    a.raw("s_cmp_lg_u32 s3, 0")
    a.raw("s_cbranch_scc1 L_noflush")
    a.raw("s_waitcnt vmcnt(0)")
    a.raw("s_memrealtime s[98:99]")
    a.raw("s_waitcnt lgkmcnt(0)")
    a.salu("s_lshl_b32 s76, s2, 8")
    a.salu("s_add_u32 s76, s76, 0x1000000")
    a.valu("v_mov_b32 v253, 0", [253], [])
    for k in list(range(_stamp[0])) + [8, 9]:
        a.valu("v_mov_b32 v252, s%d" % (80 + 2 * k), [252], [])
        a.ins("vst", "buffer_store_dword v252, v253, s[%d:%d], s76 offen offset:%d" % (SRD_WS, SRD_WS + 3, 4 * k), rd=[252, 253])
        a.raw("s_waitcnt vmcnt(0)")
    a.label("L_noflush")

def srd(a, base_lo, dst, size):
    a.salu("s_mov_b32 s%d, s%d" % (dst, base_lo))
    a.salu("s_and_b32 s%d, s%d, 0xffff" % (dst + 1, base_lo + 1))
    a.salu("s_mov_b32 s%d, 0x%x" % (dst + 2, size))
    a.salu("s_mov_b32 s%d, 0x00020000" % (dst + 3))

def producer(a, is_k):
    ring = KRING if is_k else VRING
    if PPRIO:
        a.raw("s_setprio %d" % PPRIO)
    sr = SRD_K if is_k else SRD_V
    a.valu("v_and_b32 v3, 15, v1", [3], [1])
    a.valu("v_lshlrev_b32 v2, 10, v3", [2], [3])
    a.valu("v_lshrrev_b32 v3, 4, v1", [3], [1])
    a.valu("v_lshlrev_b32 v3, 4, v3", [3], [3])
    a.valu("v_add_u32 v2, v2, v3", [2], [2, 3])
    a.valu("v_lshrrev_b32 v8, 4, v1", [8], [1])
    a.valu("v_and_b32 v9, 15, v1", [9], [1])
    a.valu("v_lshlrev_b32 v10, 8, v8", [10], [8])
    for ii in range(4):
        if is_k:
            a.valu("v_add_u32 v11, %d, v8" % (4 * ii), [11], [8])
        else:
            a.valu("v_lshlrev_b32 v11, 2, v8", [11], [8])
            a.valu("v_or_b32 v11, %d, v11" % ii, [11], [11])
        a.valu("v_xor_b32 v11, v9, v11", [11], [9, 11])
        a.valu("v_lshlrev_b32 v11, 4, v11", [11], [11])
        a.valu("v_add_u32 v%d, v10, v11" % (4 + ii), [4 + ii], [10, 11])
    a.salu("s_lshl_b32 s76, s5, 15")
    a.salu("s_lshl_b32 s77, s2, 17")
    s0 = 0 if is_k else 16
    for s in range(s0, s0 + 16):
        a.salu("s_add_u32 s78, s76, %d" % ((s >> 1) * 64 + (s & 1) * 16384))
        a.salu("s_mov_b32 m0, %d" % (XO + s * 1024), swr=["m0"])
        a.ins("dma", "buffer_load_dwordx4 v2, s[%d:%d], s78 offen lds" % (SRD_X, SRD_X + 3), rd=[2], uses_m0=True)

    a.valu("v_lshlrev_b32 v12, 4, v1", [12], [1])
    a.salu("s_lshl_b32 s79, s5, 17")
    a.salu("s_lshl_b32 s78, s4, 10")
    a.salu("s_add_u32 s79, s79, s78")
    for r in range(8):
        rr = r if is_k else r + 8
        a.salu("s_add_u32 s78, s79, %d" % (rr * 8192))
        d = 32 + 4 * r
        a.ins("vld", "buffer_load_dwordx4 v[%d:%d], v12, s[%d:%d], s78 offen" % (d, d + 3, SRD_WQ, SRD_WQ + 3), rd=[12], wr=R(d, 4))

    def wo_prefetch():
        a.salu("s_lshl_b32 s79, s4, 19")
        a.salu("s_lshl_b32 s78, s5, 14")
        a.salu("s_add_u32 s79, s79, s78")
        for r in range(16):
            a.salu("s_add_u32 s78, s79, %d" % (r * 1024))
            d = 64 + 4 * r
            a.ins("vld", "buffer_load_dwordx4 v[%d:%d], v12, s[%d:%d], s78 offen" % (d, d + 3, SRD_WO, SRD_WO + 3), rd=[12], wr=R(d, 4))

    def tile(j):
        if j == 4:
            lbase = XO + (0 if is_k else 16384)
        else:
            lbase = ring + (j if j < 4 else j - 5) * 16384
        for g in range(4):
            a.salu("s_add_u32 s78, s77, %d" % (j * 16384 + g * 4096))
            a.salu("s_mov_b32 m0, %d" % (lbase + g * 4096), swr=["m0"])
            for ii in range(4):
                off = (" offset:%d" % (ii * 1024)) if ii else ""
                a.ins("dma", "buffer_load_dwordx4 v%d, s[%d:%d], s78 offen%s nt lds" % (4 + ii, sr, sr + 3, off),
                      rd=[4 + ii], uses_m0=True)

    pst = [-int(os.environ.get("PSKIP", "0"))]
    def B():
        if PROF and pst[0] < 8:
            k = pst[0]; pst[0] += 1
            if k >= 0:
                a.raw("s_memrealtime s[%d:%d]" % (80 + 2 * k, 81 + 2 * k))
        a.barrier()
    W = a.wait_vm
    if is_k:
        tile(0); tile(1); W(32); B()
        tile(2); tile(3); W(32); B()
        tile(4); B()
        tile(5); W(48); B()
        tile(6); W(48); B()
        tile(7); W(48); B()
        wo_prefetch(); W(48); B()
        W(32); B()
        W(16); B()
        W(0)
    else:
        tile(0); tile(1); W(32); B()
        tile(2); tile(3); W(32); B()
        tile(4); B()
        B()
        W(32); B()
        tile(5); W(32); B()
        tile(6); W(32); B()
        tile(7); W(32); B()
        W(16); B()
        W(0); B()
    if PROF:
        a.raw("s_waitcnt lgkmcnt(0)")
        a.salu("s_lshl_b32 s76, s2, 8")
        a.salu("s_add_u32 s76, s76, 0x1000000")
        a.valu("v_mov_b32 v253, 0", [253], [])
        for k in range(8):
            a.valu("v_mov_b32 v%d, s%d" % (240 + k, 80 + 2 * k), [240 + k], [])
            a.ins("vst", "buffer_store_dword v%d, v253, s[%d:%d], s76 offen offset:%d" % (240 + k, SRD_WS, SRD_WS + 3, (64 if is_k else 128) + 4 * k), rd=[240 + k, 253])
    a.raw("s_endpgm")

V_WQOFF = 2
V_WOOFF = 3
V_XO = 5
V_XOW = 14
V_L = 8
V_ALPHA = 9
V_T0, V_T1 = 10, 15
V_M = [6, 12]
V_MC = [7, 11]
V_SUM = [248, 249, 250, 251]
V_ST = 13
KADDR = 16
VADDR = 24
QF = 32
OACC = 64
SBUF = 128
FRAG = 192
LBUF = 128
NST = 3
AFR = 224
BFR = 32

def proj_phase(a, which):
    def perms(s, j):
        buf = LBUF + (s % NST) * 32
        sel = S_SELLO if (j & 1) == 0 else S_SELHI
        q = j >> 1
        for p in range(4):
            lo = buf + (2 * p) * 4 + q
            hi = buf + (2 * p + 1) * 4 + q
            d = AFR + 4 * j + p
            a.valu("v_perm_b32 v%d, v%d, v%d, s%d" % (d, hi, lo, sel), [d], [hi, lo])
    def bread(s):
        if ROT:
            t = V_T0 if (s & 1) == 0 else V_T1
            a.valu("v_add_u32 v%d, s%d, v%d" % (t, S_XOFF, V_XO), [t], [V_XO])
            a.salu("s_add_u32 s%d, s%d, 0x800" % (S_XOFF, S_XOFF))
            a.salu("s_and_b32 s%d, s%d, 0x7fff" % (S_XOFF, S_XOFF))
            for nq in range(2):
                d = BFR + (s & 1) * 8 + 4 * nq
                a.ins("dsr", "ds_read_b128 v[%d:%d], v%d offset:%d" % (d, d + 3, t, nq * 1024), rd=[t], wr=R(d, 4))
            return
        for nq in range(2):
            d = BFR + (s & 1) * 8 + 4 * nq
            a.ins("dsr", "ds_read_b128 v[%d:%d], v%d offset:%d" % (d, d + 3, V_XO, (2 * s + nq) * 1024), rd=[V_XO], wr=R(d, 4))
    bread(0)
    bread(1)
    for j in range(8):
        perms(0, j)
    for s in range(16):
        for j in range(8):
            for nq in range(2):
                a.mfma16(OACC + (2 * j + nq) * 4, AFR + 4 * j, BFR + (s & 1) * 8 + 4 * nq, zero=(s == 0))
            if j == 7 and s + 2 < 16:
                bread(s + 2)
            if s + 1 < 16:
                perms(s + 1, j)
            if s + NST < 16:
                proj_load1(a, which, s + NST, j)

def proj_load1(a, which, s, r):
    buf = LBUF + (s % NST) * 32
    d = buf + 4 * r
    if which == 'q':
        a.ins("vld", "buffer_load_dwordx4 v[%d:%d], v%d, s[%d:%d], s%d offen" % (d, d + 3, V_WQOFF, SRD_WQ, SRD_WQ + 3, S_ROW + r),
              rd=[V_WQOFF], wr=R(d, 4))
        a.salu("s_add_u32 s%d, s%d, 0x40000" % (S_ROW + r, S_ROW + r))
        if ROT:
            a.salu("s_and_b32 s%d, s%d, 0x3fffff" % (S_ROW + r, S_ROW + r))
    else:
        aa, rr = r >> 2, r & 3
        off = (" offset:%d" % (rr * 1024)) if rr else ""
        a.ins("vld", "buffer_load_dwordx4 v[%d:%d], v%d, s[%d:%d], s%d offen%s" % (d, d + 3, V_WOOFF + aa, SRD_WO, SRD_WO + 3, S_WOOFF, off),
              rd=[V_WOOFF + aa], wr=R(d, 4))
        if r == 7:
            if ROT:
                a.salu("s_add_u32 s%d, s%d, 0x8000" % (S_WST, S_WST))
                a.salu("s_and_b32 s%d, s%d, 0x7ffff" % (S_WST, S_WST))
                a.salu("s_or_b32 s%d, s%d, s%d" % (S_WOOFF, S_WST, S_WBASE))
            else:
                a.salu("s_add_u32 s%d, s%d, 0x8000" % (S_WOOFF, S_WOOFF))

def proj_loads(a, which, s):
    for r in range(8):
        proj_load1(a, which, s, r)

CBLK = 224
S_ONES = 69
S_XOFF = 78
S_WST = 79
S_WBASE = 77
ROT = int(os.environ.get("ROT", "1"))

def hz_save(a):
    return (a.slot, dict(a.w_valu), dict(a.w_trans), dict(a.w_mfma), list(a.vm), list(a.lg))
def hz_restore(a, sv):
    assert a.vm == sv[4] and a.lg == sv[5]
    a.slot, a.w_valu, a.w_trans, a.w_mfma = sv[0], sv[1], sv[2], sv[3]

def softmax_items(i):
    it = []
    sb = SBUF + 32 * (i & 1)
    BIG = 1 << 20
    def add(cost, fn, before=BIG):
        it.append((cost, before, fn))
    def v(text, wr, rd, cost=4, before=BIG):
        add(cost, lambda a: a.valu(text, wr, rd), before)
    def tr(text, wr, rd):
        add(8, lambda a: a.trans(text, wr, rd))
    tA, tB = V_T0, V_T1
    hb = 0 if i == 0 else 16
    chains = []
    for (t, base) in ((tA, sb), (tB, sb + 16)):
        c = [("v_max3_f32 v%d, v%d, v%d, v%d" % (t, base, base + 1, base + 2), [t], [base, base + 1, base + 2])]
        for k in range(3, 15, 2):
            c.append(("v_max3_f32 v%d, v%d, v%d, v%d" % (t, t, base + k, base + k + 1), [t], [t, base + k, base + k + 1]))
        chains.append(c)
    for x, y in zip(*chains):
        v(*x, before=hb); v(*y, before=hb)
    v("v_max3_f32 v%d, v%d, v%d, v%d" % (tA, tA, sb + 15, sb + 31), [tA], [tA, sb + 15, sb + 31], before=hb)
    v("v_max_f32 v%d, v%d, v%d" % (tA, tA, tB), [tA], [tA, tB], before=hb)
    if i == 0:
        v("v_mov_b32 v%d, v%d" % (tB, tA), [tB], [tA], before=0)
        add(4, lambda a: a.ins("perml", "v_permlane32_swap_b32 v%d, v%d" % (tA, tB), rd=[tA, tB], wr=[tA, tB]), 0)
        v("v_max_f32 v%d, v%d, v%d" % (tA, tA, tB), [tA], [tA, tB], before=0)
        for k in range(16):
            v("v_sub_f32 v%d, 0, v%d" % (CBLK + k, tA), [CBLK + k], [tA], before=0)
    else:
        def upd(a):
            a.ins("valu", "v_cmp_lt_f32 vcc, s%d, v%d" % (S_TAU, tA), rd=[tA], swr=["vcc"])
            a.raw("s_cbranch_vccz L_noupd%d" % i)
            sv = hz_save(a)
            a.raw("s_nop 2", 3)
            a.valu("v_mov_b32 v%d, v%d" % (tB, tA), [tB], [tA])
            a.ins("perml", "v_permlane32_swap_b32 v%d, v%d" % (tA, tB), rd=[tA, tB], wr=[tA, tB])
            a.valu("v_max_f32 v%d, v%d, v%d" % (tA, tA, tB), [tA], [tA, tB])
            a.ins("valu", "v_cmp_lt_f32 vcc, s%d, v%d" % (S_TAU, tA), rd=[tA], swr=["vcc"])
            a.ins("valu", "v_cndmask_b32 v%d, 0, v%d, vcc" % (tA, tA), rd=[tA], wr=[tA], srd=["vcc"])
            a.trans("v_exp_f32 v%d, -v%d" % (V_ALPHA, tA), [V_ALPHA], [tA])
            for k in range(32):
                a.valu("v_sub_f32 v%d, v%d, v%d" % (sb + k, sb + k, tA), [sb + k], [sb + k, tA])
            for k in range(16):
                a.valu("v_sub_f32 v%d, v%d, v%d" % (CBLK + k, CBLK + k, tA), [CBLK + k], [CBLK + k, tA])
            for r in V_SUM:
                a.valu("v_mul_f32 v%d, v%d, v%d" % (r, r, V_ALPHA), [r], [r, V_ALPHA])
            a.salu("s_mov_b64 s[%d:%d], -1" % (S_FLAG, S_FLAG + 1))
            a.raw("s_nop 1", 2)
            a.label("L_noupd%d" % i)
            hz_restore(a, sv)
        add(8, upd, 16)
    for g in range(4):
        b8 = sb + 8 * g
        def e(k):
            r = b8 + k
            if i == 0:
                v("v_sub_f32 v%d, v%d, v%d" % (r, r, tA), [r], [r, tA])
            tr("v_exp_f32 v%d, v%d" % (r, r), [r], [r])
        def c(p):
            d = b8 + p
            v("v_cvt_pk_bf16_f32 v%d, v%d, v%d" % (d, b8 + 2 * p, b8 + 2 * p + 1), [d], [b8 + 2 * p, b8 + 2 * p + 1])
        def dt(p):
            d = b8 + p
            sr = V_SUM[p]
            if i == 0 and g == 0:
                v("v_dot2_f32_bf16 v%d, v%d, s%d, 0" % (sr, d, S_ONES), [sr], [d])
            else:
                v("v_dot2_f32_bf16 v%d, v%d, s%d, v%d" % (sr, d, S_ONES, sr), [sr], [d, sr])
        e(0); e(1); e(2); c(0); e(3); e(4); c(1); e(5); e(6); c(2); e(7); dt(0); c(3); dt(1); dt(2); dt(3)
    return it

frag_ctr = [0]

def iter_items(i):
    M = []
    if 1 <= i <= 8:
        j = i - 1
        slot = 0 if j == 4 else (j if j < 4 else j - 5)
        far = (XO + 16384 - VRING) if j == 4 else 0
        pb = SBUF + 32 * (j & 1)
        for t in range(4):
            for u in range(4):
                f = FRAG + 4 * (frag_ctr[0] % 8); frag_ctr[0] += 1
                def ld(a, f=f, u=u, t=t, slot=slot, far=far):
                    for aa in range(2):
                        va = VADDR + 2 * u + aa
                        if far and t == 0:
                            a.valu("v_add_u32 v%d, 0x%x, v%d" % (va, far, va), [va], [va])
                        a.ins("dsr", "ds_read_b64_tr_b16 v[%d:%d], v%d offset:%d" % (f + 2 * aa, f + 2 * aa + 1, va, slot * 16384 + t * 4096 + aa * 2048),
                              rd=[va], wr=[f + 2 * aa, f + 2 * aa + 1])
                        if far and t == 3:
                            a.valu("v_subrev_u32 v%d, 0x%x, v%d" % (va, far, va), [va], [va])
                pf = pb + 16 * (t >> 1) + 8 * (t & 1)
                def mm(a, f=f, u=u, pf=pf, z=(j == 0 and t == 0)):
                    a.mfma(OACC + 16 * u, f, pf, zero=z)
                M.append((ld, mm, 8))
    if -1 <= i <= 6:
        j = i + 1
        slot = 0 if j == 4 else (j if j < 4 else j - 5)
        far = (XO - KRING) if j == 4 else 0
        sb = SBUF + 32 * (j & 1)
        for tt in range(2):
            for ez in range(8):
                f = FRAG + 4 * (frag_ctr[0] % 8); frag_ctr[0] += 1
                def ld(a, f=f, ez=ez, tt=tt, slot=slot, far=far):
                    ka = KADDR + ez
                    if far and tt == 0:
                        a.valu("v_add_u32 v%d, 0x%x, v%d" % (ka, far, ka), [ka], [ka])
                    a.ins("dsr", "ds_read_b128 v[%d:%d], v%d offset:%d" % (f, f + 3, ka, slot * 16384 + tt * 8192),
                          rd=[ka], wr=R(f, 4))
                    if far and tt == 1:
                        a.valu("v_subrev_u32 v%d, 0x%x, v%d" % (ka, far, ka), [ka], [ka])
                def mm(a, f=f, ez=ez, tt=tt, sb=sb, j=j):
                    if ez == 0 and j >= 1:
                        a.mfma_c(sb + 16 * tt, f, QF + 4 * ez, CBLK)
                    else:
                        a.mfma(sb + 16 * tt, f, QF + 4 * ez, zero=(ez == 0))
                M.append((ld, mm, 4))
    return M

DPRE = 5

def run_phase2(a):
    import copy
    its = list(range(-1, 9))
    Ms = {i: iter_items(i) for i in its}
    flat = [(i, n) for i in its for n in range(len(Ms[i]))]
    pos = {k: idx for idx, k in enumerate(flat)}
    issued = [0]
    def load_upto(idx):
        while issued[0] <= idx and issued[0] < len(flat):
            i, n = flat[issued[0]]
            Ms[i][n][0](a)
            issued[0] += 1
    for i in its:
        a.barrier()
        stamp(a, "it%d" % i)
        a.comment("---- iteration %d" % i)
        M = Ms[i]
        V = softmax_items(i) if 0 <= i <= 7 else []
        nM = len(M)
        tot = sum(x[0] for x in V)
        vi = 0; cum = 0
        if i == -1:
            load_upto(DPRE - 1)
        for n in range(nM):
            while vi < len(V) and any(x[1] <= n for x in V[vi:]):
                V[vi][2](a); cum += V[vi][0]; vi += 1
            M[n][1](a)
            load_upto(pos[(i, n)] + DPRE)
            target = tot * (n + 1) / (nM - 1)
            while vi < len(V) and cum + V[vi][0] / 2 <= target:
                V[vi][2](a); cum += V[vi][0]; vi += 1
        while vi < len(V):
            V[vi][2](a); vi += 1
        if 1 <= i <= 7:
            a.raw("s_cmp_lg_u64 s[%d:%d], 0" % (S_FLAG, S_FLAG + 1))
            a.raw("s_cbranch_scc0 L_noresc%d" % i)
            saved = hz_save(a)
            for r in range(OACC, OACC + 64):
                a.valu("v_mul_f32 v%d, v%d, v%d" % (r, r, V_ALPHA), [r], [r, V_ALPHA])
            a.salu("s_mov_b64 s[%d:%d], 0" % (S_FLAG, S_FLAG + 1))
            a.raw("s_nop 1")
            a.label("L_noresc%d" % i)
            hz_restore(a, saved)
        stamp(a, "e%d" % i)

def consumer(a):
    a.valu("v_and_b32 v16, 31, v1", [16], [1])
    a.valu("v_lshrrev_b32 v17, 5, v1", [17], [1])
    a.salu("s_lshl_b32 s76, s4, 2")
    a.salu("s_add_u32 s76, s76, s3")
    a.salu("s_lshl_b32 s76, s76, 8")
    a.valu("v_lshrrev_b32 v19, 4, v1", [19], [1])
    a.valu("v_lshlrev_b32 v2, 16, v19", [2], [19])
    a.valu("v_and_b32 v18, 15, v1", [18], [1])
    a.valu("v_lshlrev_b32 v18, 4, v18", [18], [18])
    a.valu("v_add_u32 v2, v2, v18", [2], [2, 18])
    a.valu("v_add_u32 v2, s76, v2", [2], [2])
    if ROT:
        a.salu("s_lshr_b32 s%d, s5, 1" % S_XOFF)
        a.salu("s_lshl_b32 s76, s%d, 18" % S_XOFF)
        for r in range(8):
            a.salu("s_add_u32 s%d, s76, %d" % (S_ROW + r, r * 8192))
        a.salu("s_lshl_b32 s%d, s%d, 15" % (S_WST, S_XOFF))
        a.salu("s_lshl_b32 s%d, s%d, 11" % (S_XOFF, S_XOFF))
    else:
        for r in range(8):
            a.salu("s_mov_b32 s%d, %d" % (S_ROW + r, r * 8192))
    if EARLYQ:
        for s in range(NST):
            proj_loads(a, 'q', s)
    a.salu("s_lshl_b32 s76, s3, 8")
    a.valu("v_lshlrev_b32 v3, 14, v17", [3], [17])
    a.valu("v_and_b32 v20, 1, v19", [20], [19])
    a.valu("v_lshlrev_b32 v20, 12, v20", [20], [20])
    a.valu("v_add_u32 v3, v3, v20", [3], [3, 20])
    a.valu("v_add_u32 v3, v3, v18", [3], [3, 18])
    a.valu("v_add_u32 v3, s76, v3", [3], [3])
    a.valu("v_add_u32 v4, 0x2000, v3", [4], [3])
    a.salu("s_lshl_b32 s%d, s4, 19" % S_WOOFF)
    if ROT:
        a.salu("s_mov_b32 s%d, s%d" % (S_WBASE, S_WOOFF))
        a.salu("s_or_b32 s%d, s%d, s%d" % (S_WOOFF, S_WST, S_WBASE))
    a.valu("v_lshlrev_b32 v13, 4, v1", [13], [1])
    a.valu("v_add_u32 v5, 0x%x, v13" % XO, [5], [13])
    a.salu("s_lshl_b32 s76, s3, 13")
    a.salu("s_add_u32 s76, s76, 0x%x" % XO)
    a.valu("v_lshrrev_b32 v20, 4, v16", [20], [16])
    a.valu("v_lshlrev_b32 v20, 10, v20", [20], [20])
    a.valu("v_lshlrev_b32 v21, 8, v17", [21], [17])
    a.valu("v_add_u32 v20, v20, v21", [20], [20, 21])
    a.valu("v_add_u32 v20, v20, v18", [20], [20, 18])
    a.valu("v_add_u32 v14, s76, v20", [14], [20])
    a.salu("s_lshl_b32 s76, s2, 2")
    a.salu("s_add_u32 s76, s76, s3")
    a.salu("s_lshl_b32 s76, s76, 14")
    for j in range(4):
        a.salu("s_add_u32 s%d, s76, %d" % (S_ST + j, j * 4096))
    a.valu("v_lshrrev_b32 v18, 4, v1", [18], [1])
    a.valu("v_and_b32 v18, 1, v18", [18], [18])
    a.valu("v_lshrrev_b32 v19, 2, v1", [19], [1])
    a.valu("v_and_b32 v19, 3, v19", [19], [19])
    a.valu("v_and_b32 v20, 3, v1", [20], [1])
    a.valu("v_lshrrev_b32 v21, 1, v20", [21], [20])
    a.valu("v_xor_b32 v21, v21, v17", [21], [21, 17])
    a.valu("v_lshlrev_b32 v22, 2, v19", [22], [19])
    a.valu("v_or_b32 v21, v21, v22", [21], [21, 22])
    a.valu("v_lshlrev_b32 v22, 1, v18", [22], [18])
    a.valu("v_or_b32 v21, v21, v22", [21], [21, 22])
    a.valu("v_lshlrev_b32 v21, 4, v21", [21], [21])
    a.valu("v_and_b32 v20, 1, v20", [20], [20])
    a.valu("v_lshlrev_b32 v20, 3, v20", [20], [20])
    a.valu("v_or_b32 v21, v21, v20", [21], [21, 20])
    a.valu("v_lshlrev_b32 v22, 2, v17", [22], [17])
    a.valu("v_add_u32 v22, v22, v19", [22], [22, 19])
    a.valu("v_lshlrev_b32 v22, 8, v22", [22], [22])
    a.valu("v_add_u32 v21, v21, v22", [21], [21, 22])
    a.valu("v_add_u32 v21, 0x%x, v21" % VRING, [21], [21])
    for u in range(4):
        for aa in range(2):
            d = VADDR + 2 * u + aa
            a.valu("v_xor_b32 v%d, 0x%x, v21" % (d, (4 * u + 2 * aa) << 4), [d], [21])
    a.valu("v_and_b32 v18, 15, v16", [18], [16])
    a.valu("v_lshlrev_b32 v19, 3, v17", [19], [17])
    a.valu("v_xor_b32 v18, v18, v19", [18], [18, 19])
    a.valu("v_lshlrev_b32 v18, 4, v18", [18], [18])
    a.valu("v_lshlrev_b32 v19, 8, v16", [19], [16])
    a.valu("v_add_u32 v15, v18, v19", [15], [18, 19])
    for e in range(8):
        d = KADDR + e
        a.valu("v_xor_b32 v%d, 0x%x, v15" % (d, e << 4), [d], [15])
    stamp(a, "preB0")
    a.barrier()
    stamp(a, "B0")
    if not EARLYQ:
        for s in range(NST):
            proj_loads(a, 'q', s)
    proj_phase(a, 'q')
    for i in range(4):
        for nq in range(2):
            for p in range(4):
                t0 = OACC + (2 * (2 * p) + nq) * 4 + i
                t1 = OACC + (2 * (2 * p + 1) + nq) * 4 + i
                d = QF + 4 * (4 * nq + i) + p
                a.valu("v_mul_f32 v%d, s%d, v%d" % (t0, S_C, t0), [t0], [t0])
                a.valu("v_mul_f32 v%d, s%d, v%d" % (t1, S_C, t1), [t1], [t1])
                a.valu("v_cvt_pk_bf16_f32 v%d, v%d, v%d" % (d, t0, t1), [d], [t0, t1])
    for i in range(4):
        for p in range(4):
            da = QF + 4 * i + p
            db = QF + 4 * (4 + i) + p
            a.ins("perml", "v_permlane16_swap_b32 v%d, v%d" % (da, db), rd=[da, db], wr=[da, db])
    stamp(a, "ph1")
    run_phase2(a)
    for s in range(NST):
        proj_loads(a, 'o', s)
    a.valu("v_add_f32 v%d, v%d, v%d" % (V_L, V_SUM[0], V_SUM[1]), [V_L], [V_SUM[0], V_SUM[1]])
    a.valu("v_add_f32 v%d, v%d, v%d" % (V_T1, V_SUM[2], V_SUM[3]), [V_T1], [V_SUM[2], V_SUM[3]])
    a.valu("v_add_f32 v%d, v%d, v%d" % (V_L, V_L, V_T1), [V_L], [V_L, V_T1])
    a.valu("v_mov_b32 v%d, v%d" % (V_T1, V_L), [V_T1], [V_L])
    a.ins("perml", "v_permlane32_swap_b32 v%d, v%d" % (V_L, V_T1), rd=[V_L, V_T1], wr=[V_L, V_T1])
    a.valu("v_add_f32 v%d, v%d, v%d" % (V_L, V_L, V_T1), [V_L], [V_L, V_T1])
    a.trans("v_rcp_f32 v%d, v%d" % (V_L, V_L), [V_L], [V_L])
    for u in range(4):
        for t in range(2):
            for p in range(4):
                r0 = OACC + 16 * u + 8 * t + 2 * p
                a.valu("v_mul_f32 v%d, v%d, v%d" % (r0, r0, V_L), [r0], [r0, V_L])
                a.valu("v_mul_f32 v%d, v%d, v%d" % (r0 + 1, r0 + 1, V_L), [r0 + 1], [r0 + 1, V_L])
            for p in range(4):
                r0 = OACC + 16 * u + 8 * t + 2 * p
                d = QF + 4 * (2 * u + t) + p
                a.valu("v_cvt_pk_bf16_f32 v%d, v%d, v%d" % (d, r0, r0 + 1), [d], [r0, r0 + 1])
            d = QF + 4 * (2 * u + t)
            a.ins("dsw", "ds_write_b128 v%d, v[%d:%d] offset:%d" % (V_XOW, d, d + 3, u * 2048 + t * 512), rd=[V_XOW] + R(d, 4))
    a.wait_lg(0)
    a.barrier()
    stamp(a, "B11")
    proj_phase(a, 'o')
    for j in range(4):
        for g in range(4):
            d = OACC + (4 * j + g) * 4
            off = (" offset:%d" % (g * 1024)) if g else ""
            a.ins("vst", "buffer_store_dwordx4 v[%d:%d], v%d, s[%d:%d], s%d offen%s" % (d, d + 3, V_ST, SRD_WS, SRD_WS + 3, S_ST + j, off),
                  rd=[V_ST] + R(d, 4), wide_store=True)
    stamp(a, "ph3")
    stamp_flush(a)
    a.raw("s_endpgm")

def kernel1():
    out = []
    a = Asm()
    a.label(K1)
    if PROF:
        a.raw("s_memrealtime s[96:97]")
    a.raw("s_cmp_ge_u32 s2, 256")
    a.raw("s_cbranch_scc1 L_k1_end")
    a.raw("s_load_dwordx16 s[16:31], s[0:1], 0")
    a.valu("v_and_b32 v1, 63, v0", [1], [0])
    a.valu("v_lshrrev_b32 v2, 6, v0", [2], [0])
    a.ins("rfl", "v_readfirstlane_b32 s3, v2", rd=[2], swr=["s3"])
    a.salu("s_and_b32 s4, s2, 7")
    a.salu("s_lshr_b32 s5, s2, 3")
    a.salu("s_mov_b32 s%d, 0x05040100" % S_SELLO)
    a.salu("s_mov_b32 s%d, 0x07060302" % S_SELHI)
    a.salu("s_mov_b32 s%d, 0x%08x" % (S_C, f32bits(CSCALE)))
    a.salu("s_mov_b32 s%d, 0x%08x" % (S_TAU, f32bits(TAU)))
    a.salu("s_mov_b32 s%d, 0x3f803f80" % S_ONES)
    a.salu("s_mov_b64 s[%d:%d], 0" % (S_FLAG, S_FLAG + 1))
    a.raw("s_waitcnt lgkmcnt(0)")
    srd(a, 16, SRD_X, 0x100000)
    srd(a, 18, SRD_K, 0x2000000)
    srd(a, 20, SRD_V, 0x2000000)
    srd(a, 22, SRD_WQ, 0x400000)
    srd(a, 24, SRD_WO, 0x400000)
    srd(a, 30, SRD_WS, 0x1010000 if PROF else 0x1000000)
    a.raw("s_nop 4")
    a.raw("s_cmp_eq_u32 s3, 4")
    a.raw("s_cbranch_scc1 L_kprod")
    a.raw("s_cmp_eq_u32 s3, 5")
    a.raw("s_cbranch_scc1 L_vprod")
    out.append(a.text())
    c = Asm(); consumer(c); out.append(c.text())
    sys.stderr.write("consumer: %d slots, %d nop states\n" % (c.slot, c.nops))
    p = Asm(); p.label("L_kprod"); producer(p, True); out.append(p.text())
    p = Asm(); p.label("L_vprod"); producer(p, False); out.append(p.text())
    out.append("L_k1_end:\n    s_endpgm\n")
    return "".join(out)

def kernel2():
    a = Asm()
    a.label(K2)
    a.raw("s_cmp_ge_u32 s2, 256")
    a.raw("s_cbranch_scc1 L_k2_end")
    a.raw("s_load_dwordx2 s[16:17], s[0:1], 40")
    a.raw("s_load_dwordx2 s[18:19], s[0:1], 56")
    a.valu("v_and_b32 v1, 63, v0", [1], [0])
    a.valu("v_lshrrev_b32 v2, 6, v0", [2], [0])
    a.ins("rfl", "v_readfirstlane_b32 s3, v2", rd=[2], swr=["s3"])
    a.salu("s_lshr_b32 s5, s2, 3")
    a.salu("s_lshr_b32 s6, s2, 1")
    a.salu("s_and_b32 s6, s6, 3")
    a.salu("s_and_b32 s7, s2, 1")
    a.valu("v_lshlrev_b32 v3, 4, v1", [3], [1])
    a.valu("v_add_u32 v4, 0x1000, v3", [4], [3])
    a.valu("v_add_u32 v5, 0x2000, v3", [5], [3])
    a.valu("v_add_u32 v6, 0x3000, v3", [6], [3])
    a.salu("s_lshl_b32 s8, s5, 19")
    a.salu("s_lshl_b32 s9, s6, 14")
    a.salu("s_add_u32 s8, s8, s9")
    a.salu("s_lshl_b32 s9, s7, 10")
    a.salu("s_add_u32 s8, s8, s9")
    a.salu("s_lshl_b32 s9, s3, 17")
    a.salu("s_add_u32 s8, s8, s9")
    a.salu("s_add_u32 s9, s8, 0x10000")
    a.valu("v_and_b32 v8, 15, v1", [8], [1])
    a.valu("v_lshlrev_b32 v8, 10, v8", [8], [8])
    a.valu("v_lshrrev_b32 v9, 4, v1", [9], [1])
    a.valu("v_lshlrev_b32 v9, 6, v9", [9], [9])
    a.valu("v_add_u32 v8, v8, v9", [8], [8, 9])
    a.salu("s_lshl_b32 s10, s5, 15")
    a.salu("s_lshl_b32 s11, s6, 8")
    a.salu("s_add_u32 s10, s10, s11")
    a.salu("s_lshl_b32 s11, s7, 14")
    a.salu("s_add_u32 s10, s10, s11")
    a.salu("s_lshl_b32 s12, s3, 13")
    a.salu("s_sub_u32 s12, s12, 0x2000")
    a.valu("v_add_u32 v10, s12, v3", [10], [3])
    a.raw("s_waitcnt lgkmcnt(0)")
    srd(a, 16, 20, 0x100000)
    srd(a, 18, 24, 0x1000000)
    base = 16
    for hk in range(2):
        for j in range(8):
            d = base + (hk * 8 + j) * 4
            off = " offset:2048" if (j & 1) else ""
            a.ins("vld", "buffer_load_dwordx4 v[%d:%d], v%d, s[24:27], s%d offen%s" % (d, d + 3, 3 + (j >> 1), 8 + hk, off), rd=[3 + (j >> 1)], wr=R(d, 4))
    for k in range(32):
        a.valu("v_add_f32 v%d, v%d, v%d" % (base + k, base + k, base + 32 + k), [base + k], [base + k, base + 32 + k])
    a.raw("s_cmp_eq_u32 s3, 0")
    a.raw("s_cbranch_scc1 L_k2_w0")
    b = Asm(); b.slot = 1000
    for j in range(8):
        d = base + 4 * j
        b.ins("dsw", "ds_write_b128 v10, v[%d:%d] offset:%d" % (d, d + 3, j * 1024), rd=[10] + R(d, 4))
    b.wait_lg(0)
    b.barrier()
    b.raw("s_endpgm")
    c = Asm(); c.label("L_k2_w0")
    c.barrier()
    for v in range(3):
        for j in range(8):
            d = 64 + (v * 8 + j) * 4
            c.ins("dsr", "ds_read_b128 v[%d:%d], v3 offset:%d" % (d, d + 3, v * 8192 + j * 1024), rd=[3], wr=R(d, 4))
    for v in range(3):
        for k in range(32):
            c.valu("v_add_f32 v%d, v%d, v%d" % (base + k, base + k, 64 + v * 32 + k), [base + k], [base + k, 64 + v * 32 + k])
    o = 160
    for i in range(4):
        for pr in range(4):
            d = o + 4 * i + pr
            x0 = base + (2 * pr) * 4 + i
            x1 = base + (2 * pr + 1) * 4 + i
            c.valu("v_cvt_pk_bf16_f32 v%d, v%d, v%d" % (d, x0, x1), [d], [x0, x1])
    for i in range(4):
        off = (" offset:%d" % (16 * i)) if i else ""
        c.ins("vst", "buffer_store_dwordx4 v[%d:%d], v8, s[20:23], s10 offen%s" % (o + 4 * i, o + 4 * i + 3, off), rd=[8] + R(o + 4 * i, 4), wide_store=True)
    c.label("L_k2_end")
    c.raw("s_endpgm")
    return a.text() + b.text() + c.text()

def desc(name, nv, ns=102):
    return """.amdhsa_kernel %s
  .amdhsa_next_free_vgpr %d
  .amdhsa_next_free_sgpr %d
  .amdhsa_accum_offset %d
  .amdhsa_group_segment_fixed_size 0
  .amdhsa_kernarg_size 64
  .amdhsa_user_sgpr_count 2
  .amdhsa_user_sgpr_kernarg_segment_ptr 1
  .amdhsa_system_sgpr_workgroup_id_x 1
.end_amdhsa_kernel
""" % (name, nv, ns, nv)

def main(path):
    hdr = """; Kernarg layout for this problem (64 bytes, ptrs only, base s[0:1]):
;   offset   0: x   8: k_cache  16: v_cache  24: wq  32: wo  40: d_out  48: d_debug  56: d_ws
; @launch kernel=%s grid=(256,1,1) block=(384,1,1) lds=%d
; @launch kernel=%s grid=(256,1,1) block=(256,1,1) lds=24576
.amdgcn_target "amdgcn-amd-amdhsa--gfx950"
.text
""" % (K1, LDS_BYTES, K2)
    s = hdr
    for nm, body in ((K1, kernel1()), (K2, kernel2())):
        s += ".globl %s\n.p2align 8\n.type %s,@function\n" % (nm, nm) + body
    s += '.section .rodata,"a"\n.p2align 6\n' + desc(K1, 256) + ".p2align 6\n" + desc(K2, 192)
    open(path, "w").write(s)

if __name__ == "__main__":
    main(sys.argv[1] if len(sys.argv) > 1 else "cdna_kernels/%s.s" % NAME)
```

```python
import sys, struct, math
sys.path.insert(0, "work")
from asmlib import Asm, R

NAME = "standalone__gqa_block_cached__near_ridge"
K1 = NAME + "_kernel"
K2 = "reduce_kernel"

KRING = 0
VRING = 65536
XO = 131072
LDS_BYTES = 163840
OFR = 16384
STG = int(__import__("os").environ.get("STG", "1"))
STG_REG = {13: (49152, 131072), 14: (0, 65536 + 49152), 15: (131072 + 16384, 65536)}

SRD_X, SRD_K, SRD_V, SRD_WQ, SRD_WO, SRD_WS = 32, 36, 40, 44, 48, 52
S_SELLO, S_SELHI, S_C = 56, 57, 58
S_ROW = 60
S_WOOFF = 68
S_ST = 70
S_T0 = 76
S_TAU = 59
S_FLAG = 74
TAU = 8.0

def f32bits(x):
    return struct.unpack("<I", struct.pack("<f", x))[0]

CSCALE = (128.0 ** -0.5) * math.log2(math.e)
import os
PROF = int(os.environ.get("PROF", "0"))
VAR_A = int(os.environ.get("VAR_A", "0"))
EARLYQ = int(os.environ.get("EARLYQ", "0"))
PPRIO = int(os.environ.get("PPRIO", "0"))
_stamp = [0]
PST = os.environ.get("PST", "preB0,B0,ph1,it-1,it8,B11,ph3").split(",")
def stamp(a, name):
    if not PROF or name not in PST:
        return
    k = _stamp[0]; _stamp[0] += 1
    assert k < 8
    a.raw("%s s[%d:%d]" % ("s_memtime" if os.environ.get("PCYC") else "s_memrealtime", 80 + 2 * k, 81 + 2 * k))
def stamp_flush(a):
    if not PROF:
        return
    a.raw("s_cmp_lg_u32 s3, 0")
    a.raw("s_cbranch_scc1 L_noflush")
    a.raw("s_waitcnt vmcnt(0)")
    a.raw("s_memrealtime s[98:99]")
    a.raw("s_waitcnt lgkmcnt(0)")
    a.salu("s_lshl_b32 s76, s2, 8")
    a.salu("s_add_u32 s76, s76, 0x1000000")
    a.valu("v_mov_b32 v253, 0", [253], [])
    for k in list(range(_stamp[0])) + [8, 9]:
        a.valu("v_mov_b32 v252, s%d" % (80 + 2 * k), [252], [])
        a.ins("vst", "buffer_store_dword v252, v253, s[%d:%d], s76 offen offset:%d" % (SRD_WS, SRD_WS + 3, 4 * k), rd=[252, 253])
        a.raw("s_waitcnt vmcnt(0)")
    a.label("L_noflush")

def srd(a, base_lo, dst, size):
    a.salu("s_mov_b32 s%d, s%d" % (dst, base_lo))
    a.salu("s_and_b32 s%d, s%d, 0xffff" % (dst + 1, base_lo + 1))
    a.salu("s_mov_b32 s%d, 0x%x" % (dst + 2, size))
    a.salu("s_mov_b32 s%d, 0x00020000" % (dst + 3))

def producer(a, is_k):
    ring = KRING if is_k else VRING
    if PPRIO:
        a.raw("s_setprio %d" % PPRIO)
    sr = SRD_K if is_k else SRD_V
    a.valu("v_and_b32 v3, 15, v1", [3], [1])
    a.valu("v_lshlrev_b32 v2, 10, v3", [2], [3])
    a.valu("v_lshrrev_b32 v3, 4, v1", [3], [1])
    a.valu("v_lshlrev_b32 v3, 4, v3", [3], [3])
    a.valu("v_add_u32 v2, v2, v3", [2], [2, 3])
    a.valu("v_lshrrev_b32 v8, 4, v1", [8], [1])
    a.valu("v_and_b32 v9, 15, v1", [9], [1])
    a.valu("v_lshlrev_b32 v10, 8, v8", [10], [8])
    for ii in range(4):
        if is_k:
            a.valu("v_add_u32 v11, %d, v8" % (4 * ii), [11], [8])
        else:
            a.valu("v_lshlrev_b32 v11, 2, v8", [11], [8])
            a.valu("v_or_b32 v11, %d, v11" % ii, [11], [11])
        a.valu("v_xor_b32 v11, v9, v11", [11], [9, 11])
        a.valu("v_lshlrev_b32 v11, 4, v11", [11], [11])
        a.valu("v_add_u32 v%d, v10, v11" % (4 + ii), [4 + ii], [10, 11])
    a.salu("s_lshl_b32 s76, s5, 15")
    a.salu("s_lshl_b32 s77, s2, 17")
    s0 = 0 if is_k else 16
    for s in range(s0, s0 + 16):
        a.salu("s_add_u32 s78, s76, %d" % ((s >> 1) * 64 + (s & 1) * 16384))
        a.salu("s_mov_b32 m0, %d" % (XO + s * 1024), swr=["m0"])
        a.ins("dma", "buffer_load_dwordx4 v2, s[%d:%d], s78 offen lds" % (SRD_X, SRD_X + 3), rd=[2], uses_m0=True)

    a.valu("v_lshlrev_b32 v12, 4, v1", [12], [1])
    a.salu("s_lshl_b32 s79, s5, 17")
    a.salu("s_lshl_b32 s78, s4, 10")
    a.salu("s_add_u32 s79, s79, s78")
    for r in range(8):
        rr = r if is_k else r + 8
        a.salu("s_add_u32 s78, s79, %d" % (rr * 8192))
        d = 32 + 4 * r
        a.ins("vld", "buffer_load_dwordx4 v[%d:%d], v12, s[%d:%d], s78 offen" % (d, d + 3, SRD_WQ, SRD_WQ + 3), rd=[12], wr=R(d, 4))

    def wo_prefetch():
        a.salu("s_lshl_b32 s79, s4, 19")
        a.salu("s_lshl_b32 s78, s5, 14")
        a.salu("s_add_u32 s79, s79, s78")
        for r in range(16):
            a.salu("s_add_u32 s78, s79, %d" % (r * 1024))
            d = 160 + 4 * r
            a.ins("vld", "buffer_load_dwordx4 v[%d:%d], v12, s[%d:%d], s78 offen" % (d, d + 3, SRD_WO, SRD_WO + 3), rd=[12], wr=R(d, 4))

    def tile(j):
        if j == 4:
            lbase = XO + (0 if is_k else 16384)
        else:
            lbase = ring + (j if j < 4 else j - 5) * 16384
        for g in range(4):
            a.salu("s_add_u32 s78, s77, %d" % (j * 16384 + g * 4096))
            a.salu("s_mov_b32 m0, %d" % (lbase + g * 4096), swr=["m0"])
            for ii in range(4):
                off = (" offset:%d" % (ii * 1024)) if ii else ""
                a.ins("dma", "buffer_load_dwordx4 v%d, s[%d:%d], s78 offen%s nt lds" % (4 + ii, sr, sr + 3, off),
                      rd=[4 + ii], uses_m0=True)

    def lbase_of(j):
        if j == 4:
            return XO + (0 if is_k else 16384)
        return ring + (j if j < 4 else j - 5) * 16384
    def rload(j, rb):
        for g in range(4):
            a.salu("s_add_u32 s78, s77, %d" % (j * 16384 + g * 4096))
            for ii in range(4):
                off = (" offset:%d" % (ii * 1024)) if ii else ""
                d = rb + (g * 4 + ii) * 4
                a.ins("vld", "buffer_load_dwordx4 v[%d:%d], v%d, s[%d:%d], s78 offen%s nt" % (d, d + 3, 4 + ii, sr, sr + 3, off),
                      rd=[4 + ii], wr=R(d, 4))
    def rwrite(j, rb):
        a.valu("v_add_u32 v15, 0x%x, v12" % lbase_of(j), [15], [12])
        for k in range(16):
            d = rb + 4 * k
            a.ins("dsw", "ds_write_b128 v15, v[%d:%d] offset:%d" % (d, d + 3, k * 1024), rd=[15] + R(d, 4))
        a.wait_lg(0)

    def stage_setup():
        a.valu("v_lshrrev_b32 v16, 5, v1", [16], [1])
        a.valu("v_lshlrev_b32 v13, 14, v16", [13], [16])
        a.valu("v_lshrrev_b32 v16, 4, v1", [16], [1])
        a.valu("v_and_b32 v16, 1, v16", [16], [16])
        a.valu("v_lshlrev_b32 v16, 12, v16", [16], [16])
        a.valu("v_add_u32 v13, v13, v16", [13], [13, 16])
        a.valu("v_and_b32 v16, 15, v1", [16], [1])
        a.valu("v_lshlrev_b32 v16, 4, v16", [16], [16])
        a.valu("v_add_u32 v13, v13, v16", [13], [13, 16])
        a.valu("v_add_u32 v14, 0x2000, v13", [14], [13])
        a.salu("s_lshr_b32 s72, s5, 1")
    def stage(pos, half):
        a.salu("s_add_u32 s73, s72, %d" % pos)
        a.salu("s_and_b32 s73, s73, 15")
        a.salu("s_lshl_b32 s73, s73, 15")
        a.salu("s_lshl_b32 s74, s4, 19")
        a.salu("s_or_b32 s73, s73, s74")
        for w1 in range(2):
            w = 2 * half + w1
            a.salu("s_add_u32 s74, s73, %d" % (w * 256))
            for aa in range(2):
                a.salu("s_mov_b32 m0, %d" % (STG_REG[pos][half] + w1 * 8192 + aa * 4096), swr=["m0"])
                for rr in range(4):
                    off = (" offset:%d" % (rr * 1024)) if rr else ""
                    a.ins("dma", "buffer_load_dwordx4 v%d, s[%d:%d], s74 offen%s lds" % (13 + aa, SRD_WO, SRD_WO + 3, off),
                          rd=[13 + aa], uses_m0=True)

    pst = [-int(os.environ.get("PSKIP", "0"))]
    def B():
        if PROF and pst[0] < 8:
            k = pst[0]; pst[0] += 1
            if k >= 0:
                a.raw("s_memrealtime s[%d:%d]" % (80 + 2 * k, 81 + 2 * k))
        a.barrier()
    W = a.wait_vm
    LATE = os.environ.get("LATE", "")
    def start():
        if LATE == "":
            tile(0); tile(1); W(32); B()
            tile(2); tile(3); W(32); B()
        else:
            W(int(LATE)); B()
            tile(0); tile(1); tile(2); tile(3); W(32); B()
    RST = int(os.environ.get("RST", "0"))
    RA, RB = 32, 96
    if RST:
        assert STG and LATE == ""
        tile(0); tile(1); W(32); B()
        tile(2); tile(3); rload(4, RA); rload(5, RB); W(64); B()
        if is_k:
            rwrite(4, RA); rload(6, RA); B()
            rwrite(5, RB); rload(7, RB); B()
            B()
            B()
            stage_setup()
            rwrite(6, RA); wo_prefetch(); stage(13, 0); B()
            rwrite(7, RB); stage(13, 1); B()
            stage(14, 0); B()
            B()
            B()
            W(0); B()
        else:
            rwrite(4, RA); rload(6, RA); B()
            B()
            B()
            rwrite(5, RB); rload(7, RB); B()
            B()
            rwrite(6, RA); B()
            stage_setup()
            rwrite(7, RB); stage(14, 1); B()
            stage(15, 0); B()
            stage(15, 1); B()
            W(0); B()
    elif is_k:
        start()
        tile(4); B()
        tile(5); W(48); B()
        tile(6); W(48); B()
        tile(7); W(48); B()
        if STG:
            stage_setup()
            wo_prefetch(); stage(13, 0); W(64); B()
            stage(13, 1); W(64); B()
            stage(14, 0); W(64); B()
            B()
            B()
            W(0); B()
        else:
            wo_prefetch(); W(48); B()
            W(32); B()
            W(16); B()
            W(0)
    else:
        start()
        tile(4); B()
        B()
        W(32); B()
        tile(5); W(32); B()
        tile(6); W(32); B()
        tile(7); W(32); B()
        if STG:
            stage_setup()
            stage(14, 1); W(32); B()
            stage(15, 0); W(32); B()
            stage(15, 1); B()
            W(0); B()
        else:
            W(16); B()
            W(0); B()
    if PROF:
        a.raw("s_waitcnt lgkmcnt(0)")
        a.salu("s_lshl_b32 s76, s2, 8")
        a.salu("s_add_u32 s76, s76, 0x1000000")
        a.valu("v_mov_b32 v253, 0", [253], [])
        for k in range(8):
            a.valu("v_mov_b32 v%d, s%d" % (240 + k, 80 + 2 * k), [240 + k], [])
            a.ins("vst", "buffer_store_dword v%d, v253, s[%d:%d], s76 offen offset:%d" % (240 + k, SRD_WS, SRD_WS + 3, (64 if is_k else 128) + 4 * k), rd=[240 + k, 253])
    a.raw("s_endpgm")

V_WQOFF = 2
V_WOOFF = 3
V_XO = 5
V_XOW = 14
V_L = 8
V_ALPHA = 9
V_T0, V_T1 = 10, 15
V_M = [6, 12]
V_MC = [7, 11]
V_SUM = [248, 249, 250, 251]
V_ST = 13
KADDR = 16
VADDR = 24
QF = 32
OACC = 64
SBUF = 128
FRAG = 192
LBUF = 128
NST = int(os.environ.get("NST", "3"))
def sreg(st, r):
    if st < 3:
        return LBUF + st * 32 + 4 * r
    return (16 + 4 * r) if r < 4 else (48 + 4 * (r - 4))
AFR = 224
BFR = 32

def proj_phase(a, which):
    def perms(s, j):
        sel = S_SELLO if (j & 1) == 0 else S_SELHI
        q = j >> 1
        for p in range(4):
            lo = sreg(s % NST, 2 * p) + q
            hi = sreg(s % NST, 2 * p + 1) + q
            d = AFR + 4 * j + p
            a.valu("v_perm_b32 v%d, v%d, v%d, s%d" % (d, hi, lo, sel), [d], [hi, lo])
    def bread(s):
        if ROT:
            t = V_T0 if (s & 1) == 0 else V_T1
            a.valu("v_add_u32 v%d, s%d, v%d" % (t, S_XOFF, V_XO), [t], [V_XO])
            a.salu("s_add_u32 s%d, s%d, 0x800" % (S_XOFF, S_XOFF))
            a.salu("s_and_b32 s%d, s%d, 0x7fff" % (S_XOFF, S_XOFF))
            for nq in range(2):
                d = BFR + (s & 1) * 8 + 4 * nq
                a.ins("dsr", "ds_read_b128 v[%d:%d], v%d offset:%d" % (d, d + 3, t, nq * 1024), rd=[t], wr=R(d, 4))
            return
        for nq in range(2):
            d = BFR + (s & 1) * 8 + 4 * nq
            a.ins("dsr", "ds_read_b128 v[%d:%d], v%d offset:%d" % (d, d + 3, V_XO, (2 * s + nq) * 1024), rd=[V_XO], wr=R(d, 4))
    bread(0)
    bread(1)
    for j in range(8):
        perms(0, j)
    for s in range(16):
        for j in range(8):
            for nq in range(2):
                a.mfma16(OACC + (2 * j + nq) * 4, AFR + 4 * j, BFR + (s & 1) * 8 + 4 * nq, zero=(s == 0))
            if j == 7 and s + 2 < 16:
                bread(s + 2)
            if s + 1 < 16:
                perms(s + 1, j)
            if s + NST < 16:
                proj_load1(a, which, s + NST, j)

def proj_load1(a, which, s, r):
    d = sreg(s % NST, r)
    if which == 'q':
        a.ins("vld", "buffer_load_dwordx4 v[%d:%d], v%d, s[%d:%d], s%d offen" % (d, d + 3, V_WQOFF, SRD_WQ, SRD_WQ + 3, S_ROW + r),
              rd=[V_WQOFF], wr=R(d, 4))
        a.salu("s_add_u32 s%d, s%d, 0x40000" % (S_ROW + r, S_ROW + r))
        if ROT:
            a.salu("s_and_b32 s%d, s%d, 0x3fffff" % (S_ROW + r, S_ROW + r))
    else:
        if STG and s >= 13:
            if r == 0:
                a.valu("v_add_u32 v6, s%d, v%d" % (S_ROW + s - 13, V_ST), [6], [V_ST])
            a.ins("dsr", "ds_read_b128 v[%d:%d], v6 offset:%d" % (d, d + 3, r * 1024), rd=[6], wr=R(d, 4))
            return
        aa, rr = r >> 2, r & 3
        off = (" offset:%d" % (rr * 1024)) if rr else ""
        a.ins("vld", "buffer_load_dwordx4 v[%d:%d], v%d, s[%d:%d], s%d offen%s" % (d, d + 3, V_WOOFF + aa, SRD_WO, SRD_WO + 3, S_WOOFF, off),
              rd=[V_WOOFF + aa], wr=R(d, 4))
        if r == 7:
            if ROT:
                a.salu("s_add_u32 s%d, s%d, 0x8000" % (S_WST, S_WST))
                a.salu("s_and_b32 s%d, s%d, 0x7ffff" % (S_WST, S_WST))
                a.salu("s_or_b32 s%d, s%d, s%d" % (S_WOOFF, S_WST, S_WBASE))
            else:
                a.salu("s_add_u32 s%d, s%d, 0x8000" % (S_WOOFF, S_WOOFF))

def proj_loads(a, which, s):
    for r in range(8):
        proj_load1(a, which, s, r)

CBLK = 224
S_ONES = 69
S_XOFF = 78
S_WST = 79
S_WBASE = 77
ROT = int(os.environ.get("ROT", "1"))

def hz_save(a):
    return (a.slot, dict(a.w_valu), dict(a.w_trans), dict(a.w_mfma), list(a.vm), list(a.lg))
def hz_restore(a, sv):
    assert a.vm == sv[4] and a.lg == sv[5]
    a.slot, a.w_valu, a.w_trans, a.w_mfma = sv[0], sv[1], sv[2], sv[3]

def softmax_items(i):
    it = []
    sb = SBUF + 32 * (i & 1)
    BIG = 1 << 20
    def add(cost, fn, before=BIG):
        it.append((cost, before, fn))
    def v(text, wr, rd, cost=4, before=BIG):
        add(cost, lambda a: a.valu(text, wr, rd), before)
    def tr(text, wr, rd):
        add(8, lambda a: a.trans(text, wr, rd))
    tA, tB = V_T0, V_T1
    hb = 0 if i == 0 else 16
    chains = []
    for (t, base) in ((tA, sb), (tB, sb + 16)):
        c = [("v_max3_f32 v%d, v%d, v%d, v%d" % (t, base, base + 1, base + 2), [t], [base, base + 1, base + 2])]
        for k in range(3, 15, 2):
            c.append(("v_max3_f32 v%d, v%d, v%d, v%d" % (t, t, base + k, base + k + 1), [t], [t, base + k, base + k + 1]))
        chains.append(c)
    for x, y in zip(*chains):
        v(*x, before=hb); v(*y, before=hb)
    v("v_max3_f32 v%d, v%d, v%d, v%d" % (tA, tA, sb + 15, sb + 31), [tA], [tA, sb + 15, sb + 31], before=hb)
    v("v_max_f32 v%d, v%d, v%d" % (tA, tA, tB), [tA], [tA, tB], before=hb)
    if i == 0:
        v("v_mov_b32 v%d, v%d" % (tB, tA), [tB], [tA], before=0)
        add(4, lambda a: a.ins("perml", "v_permlane32_swap_b32 v%d, v%d" % (tA, tB), rd=[tA, tB], wr=[tA, tB]), 0)
        v("v_max_f32 v%d, v%d, v%d" % (tA, tA, tB), [tA], [tA, tB], before=0)
        for k in range(16):
            v("v_sub_f32 v%d, 0, v%d" % (CBLK + k, tA), [CBLK + k], [tA], before=0)
    else:
        def upd(a):
            a.ins("valu", "v_cmp_lt_f32 vcc, s%d, v%d" % (S_TAU, tA), rd=[tA], swr=["vcc"])
            a.raw("s_cbranch_vccz L_noupd%d" % i)
            sv = hz_save(a)
            a.raw("s_nop 2", 3)
            a.valu("v_mov_b32 v%d, v%d" % (tB, tA), [tB], [tA])
            a.ins("perml", "v_permlane32_swap_b32 v%d, v%d" % (tA, tB), rd=[tA, tB], wr=[tA, tB])
            a.valu("v_max_f32 v%d, v%d, v%d" % (tA, tA, tB), [tA], [tA, tB])
            a.ins("valu", "v_cmp_lt_f32 vcc, s%d, v%d" % (S_TAU, tA), rd=[tA], swr=["vcc"])
            a.ins("valu", "v_cndmask_b32 v%d, 0, v%d, vcc" % (tA, tA), rd=[tA], wr=[tA], srd=["vcc"])
            a.trans("v_exp_f32 v%d, -v%d" % (V_ALPHA, tA), [V_ALPHA], [tA])
            for k in range(32):
                a.valu("v_sub_f32 v%d, v%d, v%d" % (sb + k, sb + k, tA), [sb + k], [sb + k, tA])
            for k in range(16):
                a.valu("v_sub_f32 v%d, v%d, v%d" % (CBLK + k, CBLK + k, tA), [CBLK + k], [CBLK + k, tA])
            for r in V_SUM:
                a.valu("v_mul_f32 v%d, v%d, v%d" % (r, r, V_ALPHA), [r], [r, V_ALPHA])
            a.salu("s_mov_b64 s[%d:%d], -1" % (S_FLAG, S_FLAG + 1))
            a.raw("s_nop 1", 2)
            a.label("L_noupd%d" % i)
            hz_restore(a, sv)
        add(8, upd, 16)
    for g in range(4):
        b8 = sb + 8 * g
        def e(k):
            r = b8 + k
            if i == 0:
                v("v_sub_f32 v%d, v%d, v%d" % (r, r, tA), [r], [r, tA])
            tr("v_exp_f32 v%d, v%d" % (r, r), [r], [r])
        def c(p):
            d = b8 + p
            v("v_cvt_pk_bf16_f32 v%d, v%d, v%d" % (d, b8 + 2 * p, b8 + 2 * p + 1), [d], [b8 + 2 * p, b8 + 2 * p + 1])
        def dt(p):
            d = b8 + p
            sr = V_SUM[p]
            if i == 0 and g == 0:
                v("v_dot2_f32_bf16 v%d, v%d, s%d, 0" % (sr, d, S_ONES), [sr], [d])
            else:
                v("v_dot2_f32_bf16 v%d, v%d, s%d, v%d" % (sr, d, S_ONES, sr), [sr], [d, sr])
        e(0); e(1); e(2); c(0); e(3); e(4); c(1); e(5); e(6); c(2); e(7); dt(0); c(3); dt(1); dt(2); dt(3)
    return it

frag_ctr = [0]

def iter_items(i):
    M = []
    if 1 <= i <= 8:
        j = i - 1
        slot = 0 if j == 4 else (j if j < 4 else j - 5)
        far = (XO + 16384 - VRING) if j == 4 else 0
        pb = SBUF + 32 * (j & 1)
        for t in range(4):
            for u in range(4):
                f = FRAG + 4 * (frag_ctr[0] % 8); frag_ctr[0] += 1
                def ld(a, f=f, u=u, t=t, slot=slot, far=far):
                    for aa in range(2):
                        va = VADDR + 2 * u + aa
                        if far and t == 0:
                            a.valu("v_add_u32 v%d, 0x%x, v%d" % (va, far, va), [va], [va])
                        a.ins("dsr", "ds_read_b64_tr_b16 v[%d:%d], v%d offset:%d" % (f + 2 * aa, f + 2 * aa + 1, va, slot * 16384 + t * 4096 + aa * 2048),
                              rd=[va], wr=[f + 2 * aa, f + 2 * aa + 1])
                        if far and t == 3:
                            a.valu("v_subrev_u32 v%d, 0x%x, v%d" % (va, far, va), [va], [va])
                pf = pb + 16 * (t >> 1) + 8 * (t & 1)
                def mm(a, f=f, u=u, pf=pf, z=(j == 0 and t == 0)):
                    a.mfma(OACC + 16 * u, f, pf, zero=z)
                M.append((ld, mm, 8, f))
    if -1 <= i <= 6:
        j = i + 1
        slot = 0 if j == 4 else (j if j < 4 else j - 5)
        far = (XO - KRING) if j == 4 else 0
        sb = SBUF + 32 * (j & 1)
        for tt in range(2):
            for ez in range(8):
                f = FRAG + 4 * (frag_ctr[0] % 8); frag_ctr[0] += 1
                def ld(a, f=f, ez=ez, tt=tt, slot=slot, far=far):
                    ka = KADDR + ez
                    if far and tt == 0:
                        a.valu("v_add_u32 v%d, 0x%x, v%d" % (ka, far, ka), [ka], [ka])
                    a.ins("dsr", "ds_read_b128 v[%d:%d], v%d offset:%d" % (f, f + 3, ka, slot * 16384 + tt * 8192),
                          rd=[ka], wr=R(f, 4))
                    if far and tt == 1:
                        a.valu("v_subrev_u32 v%d, 0x%x, v%d" % (ka, far, ka), [ka], [ka])
                def mm(a, f=f, ez=ez, tt=tt, sb=sb, j=j):
                    if ez == 0 and j >= 1:
                        a.mfma_c(sb + 16 * tt, f, QF + 4 * ez, CBLK)
                    else:
                        a.mfma(sb + 16 * tt, f, QF + 4 * ez, zero=(ez == 0))
                M.append((ld, mm, 4, f))
    return M

DPRE = int(os.environ.get("DPRE", "5"))
PAIR = int(os.environ.get("PAIR", "0"))

def run_phase2(a):
    import copy
    its = list(range(-1, 9))
    Ms = {i: iter_items(i) for i in its}
    flat = [(i, n) for i in its for n in range(len(Ms[i]))]
    pos = {k: idx for idx, k in enumerate(flat)}
    issued = [0]
    def load_upto(idx):
        while issued[0] <= idx and issued[0] < len(flat):
            i, n = flat[issued[0]]
            Ms[i][n][0](a)
            issued[0] += 1
    for i in its:
        a.barrier()
        stamp(a, "it%d" % i)
        a.comment("---- iteration %d" % i)
        M = Ms[i]
        V = softmax_items(i) if 0 <= i <= 7 else []
        nM = len(M)
        tot = sum(x[0] for x in V)
        vi = 0; cum = 0
        if i == -1:
            load_upto(DPRE - 1)
        for n in range(nM):
            while vi < len(V) and any(x[1] <= n for x in V[vi:]):
                V[vi][2](a); cum += V[vi][0]; vi += 1
            if PAIR and n % PAIR == 0:
                regs = set()
                for k in range(n, min(n + PAIR, nM)):
                    regs |= set(R(M[k][3], 4))
                a._auto_wait(regs)
            M[n][1](a)
            load_upto(pos[(i, n)] + DPRE)
            target = tot * (n + 1) / (nM - 1)
            while vi < len(V) and cum + V[vi][0] / 2 <= target:
                V[vi][2](a); cum += V[vi][0]; vi += 1
        while vi < len(V):
            V[vi][2](a); vi += 1
        if 1 <= i <= 7:
            a.raw("s_cmp_lg_u64 s[%d:%d], 0" % (S_FLAG, S_FLAG + 1))
            a.raw("s_cbranch_scc0 L_noresc%d" % i)
            saved = hz_save(a)
            for r in range(OACC, OACC + 64):
                a.valu("v_mul_f32 v%d, v%d, v%d" % (r, r, V_ALPHA), [r], [r, V_ALPHA])
            a.salu("s_mov_b64 s[%d:%d], 0" % (S_FLAG, S_FLAG + 1))
            a.raw("s_nop 1")
            a.label("L_noresc%d" % i)
            hz_restore(a, saved)
        stamp(a, "e%d" % i)

def kv_addr(a):
    a.valu("v_and_b32 v16, 31, v1", [16], [1])
    a.valu("v_lshrrev_b32 v17, 5, v1", [17], [1])
    a.valu("v_lshrrev_b32 v18, 4, v1", [18], [1])
    a.valu("v_and_b32 v18, 1, v18", [18], [18])
    a.valu("v_lshrrev_b32 v19, 2, v1", [19], [1])
    a.valu("v_and_b32 v19, 3, v19", [19], [19])
    a.valu("v_and_b32 v20, 3, v1", [20], [1])
    a.valu("v_lshrrev_b32 v21, 1, v20", [21], [20])
    a.valu("v_xor_b32 v21, v21, v17", [21], [21, 17])
    a.valu("v_lshlrev_b32 v22, 2, v19", [22], [19])
    a.valu("v_or_b32 v21, v21, v22", [21], [21, 22])
    a.valu("v_lshlrev_b32 v22, 1, v18", [22], [18])
    a.valu("v_or_b32 v21, v21, v22", [21], [21, 22])
    a.valu("v_lshlrev_b32 v21, 4, v21", [21], [21])
    a.valu("v_and_b32 v20, 1, v20", [20], [20])
    a.valu("v_lshlrev_b32 v20, 3, v20", [20], [20])
    a.valu("v_or_b32 v21, v21, v20", [21], [21, 20])
    a.valu("v_lshlrev_b32 v22, 2, v17", [22], [17])
    a.valu("v_add_u32 v22, v22, v19", [22], [22, 19])
    a.valu("v_lshlrev_b32 v22, 8, v22", [22], [22])
    a.valu("v_add_u32 v21, v21, v22", [21], [21, 22])
    a.valu("v_add_u32 v21, 0x%x, v21" % VRING, [21], [21])
    for u in range(4):
        for aa in range(2):
            d = VADDR + 2 * u + aa
            a.valu("v_xor_b32 v%d, 0x%x, v21" % (d, (4 * u + 2 * aa) << 4), [d], [21])
    a.valu("v_and_b32 v18, 15, v16", [18], [16])
    a.valu("v_lshlrev_b32 v19, 3, v17", [19], [17])
    a.valu("v_xor_b32 v18, v18, v19", [18], [18, 19])
    a.valu("v_lshlrev_b32 v18, 4, v18", [18], [18])
    a.valu("v_lshlrev_b32 v19, 8, v16", [19], [16])
    a.valu("v_add_u32 v15, v18, v19", [15], [18, 19])
    for e in range(8):
        d = KADDR + e
        a.valu("v_xor_b32 v%d, 0x%x, v15" % (d, e << 4), [d], [15])

def consumer(a):
    a.valu("v_and_b32 v16, 31, v1", [16], [1])
    a.valu("v_lshrrev_b32 v17, 5, v1", [17], [1])
    a.salu("s_lshl_b32 s76, s4, 2")
    a.salu("s_add_u32 s76, s76, s3")
    a.salu("s_lshl_b32 s76, s76, 8")
    a.valu("v_lshrrev_b32 v19, 4, v1", [19], [1])
    a.valu("v_lshlrev_b32 v2, 16, v19", [2], [19])
    a.valu("v_and_b32 v18, 15, v1", [18], [1])
    a.valu("v_lshlrev_b32 v18, 4, v18", [18], [18])
    a.valu("v_add_u32 v2, v2, v18", [2], [2, 18])
    a.valu("v_add_u32 v2, s76, v2", [2], [2])
    if ROT:
        a.salu("s_lshr_b32 s%d, s5, 1" % S_XOFF)
        a.salu("s_lshl_b32 s76, s%d, 18" % S_XOFF)
        for r in range(8):
            a.salu("s_add_u32 s%d, s76, %d" % (S_ROW + r, r * 8192))
        a.salu("s_lshl_b32 s%d, s%d, 15" % (S_WST, S_XOFF))
        a.salu("s_lshl_b32 s%d, s%d, 11" % (S_XOFF, S_XOFF))
    else:
        for r in range(8):
            a.salu("s_mov_b32 s%d, %d" % (S_ROW + r, r * 8192))
    a.salu("s_lshl_b32 s76, s3, 8")
    a.valu("v_lshlrev_b32 v3, 14, v17", [3], [17])
    a.valu("v_and_b32 v20, 1, v19", [20], [19])
    a.valu("v_lshlrev_b32 v20, 12, v20", [20], [20])
    a.valu("v_add_u32 v3, v3, v20", [3], [3, 20])
    a.valu("v_add_u32 v3, v3, v18", [3], [3, 18])
    a.valu("v_add_u32 v3, s76, v3", [3], [3])
    a.valu("v_add_u32 v4, 0x2000, v3", [4], [3])
    a.salu("s_lshl_b32 s%d, s4, 19" % S_WOOFF)
    if ROT:
        a.salu("s_mov_b32 s%d, s%d" % (S_WBASE, S_WOOFF))
        a.salu("s_or_b32 s%d, s%d, s%d" % (S_WOOFF, S_WST, S_WBASE))
    a.valu("v_lshlrev_b32 v13, 4, v1", [13], [1])
    a.valu("v_add_u32 v5, 0x%x, v13" % XO, [5], [13])
    a.salu("s_lshl_b32 s76, s3, 13")
    a.salu("s_add_u32 s76, s76, 0x%x" % (OFR if STG else XO))
    a.valu("v_lshrrev_b32 v20, 4, v16", [20], [16])
    a.valu("v_lshlrev_b32 v20, 10, v20", [20], [20])
    a.valu("v_lshlrev_b32 v21, 8, v17", [21], [17])
    a.valu("v_add_u32 v20, v20, v21", [20], [20, 21])
    a.valu("v_add_u32 v20, v20, v18", [20], [20, 18])
    a.valu("v_add_u32 v14, s76, v20", [14], [20])
    a.salu("s_lshl_b32 s76, s2, 2")
    a.salu("s_add_u32 s76, s76, s3")
    a.salu("s_lshl_b32 s76, s76, 13")
    for j in range(2):
        a.salu("s_add_u32 s%d, s76, %d" % (S_ST + j, j * 4096))
    stamp(a, "setup")
    if EARLYQ:
        for s in range(NST):
            proj_loads(a, 'q', s)
    if PROF and "first" in PST:
        a.raw("s_waitcnt vmcnt(%d)" % (8 * NST - 1))
        stamp(a, "first")
    stamp(a, "preB0")
    a.barrier()
    stamp(a, "B0")
    if not EARLYQ:
        for s in range(NST):
            proj_loads(a, 'q', s)
    proj_phase(a, 'q')
    for i in range(4):
        for nq in range(2):
            for p in range(4):
                t0 = OACC + (2 * (2 * p) + nq) * 4 + i
                t1 = OACC + (2 * (2 * p + 1) + nq) * 4 + i
                d = QF + 4 * (4 * nq + i) + p
                a.valu("v_mul_f32 v%d, s%d, v%d" % (t0, S_C, t0), [t0], [t0])
                a.valu("v_mul_f32 v%d, s%d, v%d" % (t1, S_C, t1), [t1], [t1])
                a.valu("v_cvt_pk_bf16_f32 v%d, v%d, v%d" % (d, t0, t1), [d], [t0, t1])
    for i in range(4):
        for p in range(4):
            da = QF + 4 * i + p
            db = QF + 4 * (4 + i) + p
            a.ins("perml", "v_permlane16_swap_b32 v%d, v%d" % (da, db), rd=[da, db], wr=[da, db])
    kv_addr(a)
    stamp(a, "ph1")
    run_phase2(a)
    if STG:
        a.valu("v_subrev_u32 v%d, 0x%x, v%d" % (V_XO, XO - OFR, V_XO), [V_XO], [V_XO])
        a.salu("s_and_b32 s76, s3, 1")
        a.salu("s_lshl_b32 s76, s76, 13")
        a.raw("s_cmp_ge_u32 s3, 2")
        for pos in (13, 14, 15):
            a.salu("s_mov_b32 s64, 0x%x" % STG_REG[pos][0])
            a.salu("s_mov_b32 s65, 0x%x" % STG_REG[pos][1])
            a.salu("s_cselect_b32 s%d, s65, s64" % (S_ROW + pos - 13))
        for pos in (13, 14, 15):
            a.salu("s_add_u32 s%d, s%d, s76" % (S_ROW + pos - 13, S_ROW + pos - 13))
    for s in range(NST):
        proj_loads(a, 'o', s)
    a.valu("v_add_f32 v%d, v%d, v%d" % (V_L, V_SUM[0], V_SUM[1]), [V_L], [V_SUM[0], V_SUM[1]])
    a.valu("v_add_f32 v%d, v%d, v%d" % (V_T1, V_SUM[2], V_SUM[3]), [V_T1], [V_SUM[2], V_SUM[3]])
    a.valu("v_add_f32 v%d, v%d, v%d" % (V_L, V_L, V_T1), [V_L], [V_L, V_T1])
    a.valu("v_mov_b32 v%d, v%d" % (V_T1, V_L), [V_T1], [V_L])
    a.ins("perml", "v_permlane32_swap_b32 v%d, v%d" % (V_L, V_T1), rd=[V_L, V_T1], wr=[V_L, V_T1])
    a.valu("v_add_f32 v%d, v%d, v%d" % (V_L, V_L, V_T1), [V_L], [V_L, V_T1])
    a.trans("v_rcp_f32 v%d, v%d" % (V_L, V_L), [V_L], [V_L])
    for u in range(4):
        for t in range(2):
            for p in range(4):
                r0 = OACC + 16 * u + 8 * t + 2 * p
                a.valu("v_mul_f32 v%d, v%d, v%d" % (r0, r0, V_L), [r0], [r0, V_L])
                a.valu("v_mul_f32 v%d, v%d, v%d" % (r0 + 1, r0 + 1, V_L), [r0 + 1], [r0 + 1, V_L])
            for p in range(4):
                r0 = OACC + 16 * u + 8 * t + 2 * p
                d = AFR + 4 * (2 * u + t) + p
                a.valu("v_cvt_pk_bf16_f32 v%d, v%d, v%d" % (d, r0, r0 + 1), [d], [r0, r0 + 1])
            d = AFR + 4 * (2 * u + t)
            a.ins("dsw", "ds_write_b128 v%d, v[%d:%d] offset:%d" % (V_XOW, d, d + 3, u * 2048 + t * 512), rd=[V_XOW] + R(d, 4))
    a.wait_lg(0)
    a.barrier()
    stamp(a, "B11")
    proj_phase(a, 'o')
    TMP = LBUF
    for nq in range(2):
        for i in range(4):
            for pr in range(4):
                d = TMP + (nq * 4 + i) * 4 + pr
                x0 = OACC + (2 * (2 * pr) + nq) * 4 + i
                x1 = OACC + (2 * (2 * pr + 1) + nq) * 4 + i
                a.valu("v_cvt_pk_bf16_f32 v%d, v%d, v%d" % (d, x0, x1), [d], [x0, x1])
            d = TMP + (nq * 4 + i) * 4
            off = (" offset:%d" % (i * 1024)) if i else ""
            a.ins("vst", "buffer_store_dwordx4 v[%d:%d], v%d, s[%d:%d], s%d offen%s" % (d, d + 3, V_ST, SRD_WS, SRD_WS + 3, S_ST + nq, off),
                  rd=[V_ST] + R(d, 4), wide_store=True)
    stamp(a, "ph3")
    stamp_flush(a)
    a.raw("s_endpgm")

def kernel1():
    out = []
    a = Asm()
    a.label(K1)
    if PROF:
        a.raw("s_memrealtime s[96:97]")
    a.raw("s_cmp_ge_u32 s2, 256")
    a.raw("s_cbranch_scc1 L_k1_end")
    a.raw("s_load_dwordx16 s[16:31], s[0:1], 0")
    a.valu("v_and_b32 v1, 63, v0", [1], [0])
    a.valu("v_lshrrev_b32 v2, 6, v0", [2], [0])
    a.ins("rfl", "v_readfirstlane_b32 s3, v2", rd=[2], swr=["s3"])
    a.salu("s_and_b32 s4, s2, 7")
    a.salu("s_lshr_b32 s5, s2, 3")
    a.salu("s_mov_b32 s%d, 0x05040100" % S_SELLO)
    a.salu("s_mov_b32 s%d, 0x07060302" % S_SELHI)
    a.salu("s_mov_b32 s%d, 0x%08x" % (S_C, f32bits(CSCALE)))
    a.salu("s_mov_b32 s%d, 0x%08x" % (S_TAU, f32bits(TAU)))
    a.salu("s_mov_b32 s%d, 0x3f803f80" % S_ONES)
    a.salu("s_mov_b64 s[%d:%d], 0" % (S_FLAG, S_FLAG + 1))
    a.raw("s_waitcnt lgkmcnt(0)")
    stamp(a, "karg")
    srd(a, 16, SRD_X, 0x100000)
    srd(a, 18, SRD_K, 0x2000000)
    srd(a, 20, SRD_V, 0x2000000)
    srd(a, 22, SRD_WQ, 0x400000)
    srd(a, 24, SRD_WO, 0x400000)
    srd(a, 30, SRD_WS, 0x1010000 if PROF else 0x800000)
    a.raw("s_nop 4")
    a.raw("s_cmp_eq_u32 s3, 4")
    a.raw("s_cbranch_scc1 L_kprod")
    a.raw("s_cmp_eq_u32 s3, 5")
    a.raw("s_cbranch_scc1 L_vprod")
    out.append(a.text())
    c = Asm(); consumer(c); out.append(c.text())
    sys.stderr.write("consumer: %d slots, %d nop states\n" % (c.slot, c.nops))
    p = Asm(); p.label("L_kprod"); producer(p, True); out.append(p.text())
    p = Asm(); p.label("L_vprod"); producer(p, False); out.append(p.text())
    out.append("L_k1_end:\n    s_endpgm\n")
    return "".join(out)

def kernel2():
    a = Asm()
    a.label(K2)
    a.raw("s_cmp_ge_u32 s2, 256")
    a.raw("s_cbranch_scc1 L_k2_end")
    a.raw("s_load_dwordx2 s[16:17], s[0:1], 40")
    a.raw("s_load_dwordx2 s[18:19], s[0:1], 56")
    a.valu("v_and_b32 v1, 63, v0", [1], [0])
    a.valu("v_lshrrev_b32 v2, 6, v0", [2], [0])
    a.ins("rfl", "v_readfirstlane_b32 s3, v2", rd=[2], swr=["s3"])
    a.salu("s_lshr_b32 s5, s2, 3")
    a.salu("s_lshr_b32 s6, s2, 1")
    a.salu("s_and_b32 s6, s6, 3")
    a.salu("s_and_b32 s7, s2, 1")
    a.valu("v_lshlrev_b32 v3, 4, v1", [3], [1])
    a.salu("s_lshl_b32 s8, s5, 18")
    a.salu("s_lshl_b32 s9, s6, 13")
    a.salu("s_add_u32 s8, s8, s9")
    a.salu("s_lshl_b32 s9, s7, 12")
    a.salu("s_add_u32 s8, s8, s9")
    a.salu("s_lshl_b32 s9, s3, 16")
    a.salu("s_add_u32 s8, s8, s9")
    a.salu("s_add_u32 s9, s8, 0x8000")
    a.valu("v_and_b32 v8, 15, v1", [8], [1])
    a.valu("v_lshlrev_b32 v8, 10, v8", [8], [8])
    a.valu("v_lshrrev_b32 v9, 4, v1", [9], [1])
    a.valu("v_lshlrev_b32 v9, 6, v9", [9], [9])
    a.valu("v_add_u32 v8, v8, v9", [8], [8, 9])
    a.salu("s_lshl_b32 s10, s5, 15")
    a.salu("s_lshl_b32 s11, s6, 8")
    a.salu("s_add_u32 s10, s10, s11")
    a.salu("s_lshl_b32 s11, s7, 14")
    a.salu("s_add_u32 s10, s10, s11")
    a.salu("s_lshl_b32 s12, s3, 13")
    a.salu("s_sub_u32 s12, s12, 0x2000")
    a.valu("v_add_u32 v10, s12, v3", [10], [3])
    a.salu("s_mov_b32 s13, 0xffff0000")
    a.raw("s_waitcnt lgkmcnt(0)")
    srd(a, 16, 20, 0x100000)
    srd(a, 18, 24, 0x800000)
    ld = 64
    for hk in range(2):
        for i in range(4):
            d = ld + (hk * 4 + i) * 4
            off = (" offset:%d" % (1024 * i)) if i else ""
            a.ins("vld", "buffer_load_dwordx4 v[%d:%d], v3, s[24:27], s%d offen%s" % (d, d + 3, 8 + hk, off), rd=[3], wr=R(d, 4))
    base = 16
    for k in range(16):
        A, B = ld + k, ld + 16 + k
        lo, hi = base + 2 * k, base + 2 * k + 1
        a.valu("v_lshlrev_b32 v%d, 16, v%d" % (lo, A), [lo], [A])
        a.valu("v_and_b32 v%d, s13, v%d" % (hi, A), [hi], [A])
        a.valu("v_lshlrev_b32 v%d, 16, v%d" % (A, B), [A], [B])
        a.valu("v_and_b32 v%d, s13, v%d" % (B, B), [B], [B])
        a.valu("v_add_f32 v%d, v%d, v%d" % (lo, lo, A), [lo], [lo, A])
        a.valu("v_add_f32 v%d, v%d, v%d" % (hi, hi, B), [hi], [hi, B])
    a.raw("s_cmp_eq_u32 s3, 0")
    a.raw("s_cbranch_scc1 L_k2_w0")
    b = Asm(); b.slot = 1000
    for j in range(8):
        d = base + 4 * j
        b.ins("dsw", "ds_write_b128 v10, v[%d:%d] offset:%d" % (d, d + 3, j * 1024), rd=[10] + R(d, 4))
    b.wait_lg(0)
    b.barrier()
    b.raw("s_endpgm")
    c = Asm(); c.label("L_k2_w0")
    c.barrier()
    for v in range(3):
        for j in range(8):
            d = 64 + (v * 8 + j) * 4
            c.ins("dsr", "ds_read_b128 v[%d:%d], v3 offset:%d" % (d, d + 3, v * 8192 + j * 1024), rd=[3], wr=R(d, 4))
    for v in range(3):
        for k in range(32):
            c.valu("v_add_f32 v%d, v%d, v%d" % (base + k, base + k, 64 + v * 32 + k), [base + k], [base + k, 64 + v * 32 + k])
    o = 160
    for k in range(16):
        c.valu("v_cvt_pk_bf16_f32 v%d, v%d, v%d" % (o + k, base + 2 * k, base + 2 * k + 1), [o + k], [base + 2 * k, base + 2 * k + 1])
    for i in range(4):
        off = (" offset:%d" % (16 * i)) if i else ""
        c.ins("vst", "buffer_store_dwordx4 v[%d:%d], v8, s[20:23], s10 offen%s" % (o + 4 * i, o + 4 * i + 3, off), rd=[8] + R(o + 4 * i, 4), wide_store=True)
    c.label("L_k2_end")
    c.raw("s_endpgm")
    return a.text() + b.text() + c.text()

def desc(name, nv, ns=102):
    return """.amdhsa_kernel %s
  .amdhsa_next_free_vgpr %d
  .amdhsa_next_free_sgpr %d
  .amdhsa_accum_offset %d
  .amdhsa_group_segment_fixed_size 0
  .amdhsa_kernarg_size 64
  .amdhsa_user_sgpr_count 2
  .amdhsa_user_sgpr_kernarg_segment_ptr 1
  .amdhsa_system_sgpr_workgroup_id_x 1
.end_amdhsa_kernel
""" % (name, nv, ns, nv)

def main(path):
    hdr = """; Kernarg layout for this problem (64 bytes, ptrs only, base s[0:1]):
;   offset   0: x   8: k_cache  16: v_cache  24: wq  32: wo  40: d_out  48: d_debug  56: d_ws
; @launch kernel=%s grid=(256,1,1) block=(384,1,1) lds=%d
; @launch kernel=%s grid=(256,1,1) block=(256,1,1) lds=24576
.amdgcn_target "amdgcn-amd-amdhsa--gfx950"
.text
""" % (K1, LDS_BYTES, K2)
    s = hdr
    for nm, body in ((K1, kernel1()), (K2, kernel2())):
        s += ".globl %s\n.p2align 8\n.type %s,@function\n" % (nm, nm) + body
    s += '.section .rodata,"a"\n.p2align 6\n' + desc(K1, 256) + ".p2align 6\n" + desc(K2, 192)
    open(path, "w").write(s)

if __name__ == "__main__":
    main(sys.argv[1] if len(sys.argv) > 1 else "cdna_kernels/%s.s" % NAME)
```

```python
import sys, struct, math
sys.path.insert(0, "work")
from asmlib import Asm, R

NAME = "standalone__gqa_block_cached__near_ridge"
K1 = NAME + "_kernel"
K2 = "reduce_kernel"

KRING = 0
VRING = 65536
XO = 131072
LDS_BYTES = 163840
OFR = 16384
STG = int(__import__("os").environ.get("STG", "1"))
STG_REG = {13: (49152, 131072), 14: (0, 65536 + 49152), 15: (131072 + 16384, 65536)}

SRD_X, SRD_K, SRD_V, SRD_WQ, SRD_WO, SRD_WS = 32, 36, 40, 44, 48, 52
S_SELLO, S_SELHI, S_C = 56, 57, 58
S_ROW = 60
S_WOOFF = 68
S_ST = 70
S_T0 = 76
S_TAU = 59
S_FLAG = 74
TAU = 8.0

def f32bits(x):
    return struct.unpack("<I", struct.pack("<f", x))[0]

CSCALE = (128.0 ** -0.5) * math.log2(math.e)
import os
PROF = int(os.environ.get("PROF", "0"))
VAR_A = int(os.environ.get("VAR_A", "0"))
EARLYQ = int(os.environ.get("EARLYQ", "1"))
PPRIO = int(os.environ.get("PPRIO", "0"))
_stamp = [0]
PST = os.environ.get("PST", "preB0,B0,ph1,it-1,it8,B11,ph3").split(",")
def stamp(a, name):
    if not PROF or name not in PST:
        return
    k = _stamp[0]; _stamp[0] += 1
    assert k < 8
    a.raw("%s s[%d:%d]" % ("s_memtime" if os.environ.get("PCYC") else "s_memrealtime", 80 + 2 * k, 81 + 2 * k))
def stamp_flush(a):
    if not PROF:
        return
    a.raw("s_cmp_lg_u32 s3, 0")
    a.raw("s_cbranch_scc1 L_noflush")
    a.raw("s_waitcnt vmcnt(0)")
    a.raw("s_memrealtime s[98:99]")
    a.raw("s_waitcnt lgkmcnt(0)")
    a.salu("s_lshl_b32 s76, s2, 8")
    a.salu("s_add_u32 s76, s76, 0x1000000")
    a.valu("v_mov_b32 v253, 0", [253], [])
    for k in list(range(_stamp[0])) + [8, 9]:
        a.valu("v_mov_b32 v252, s%d" % (80 + 2 * k), [252], [])
        a.ins("vst", "buffer_store_dword v252, v253, s[%d:%d], s76 offen offset:%d" % (SRD_WS, SRD_WS + 3, 4 * k), rd=[252, 253])
        a.raw("s_waitcnt vmcnt(0)")
    a.label("L_noflush")

def srd(a, base_lo, dst, size):
    a.salu("s_mov_b32 s%d, s%d" % (dst, base_lo))
    a.salu("s_and_b32 s%d, s%d, 0xffff" % (dst + 1, base_lo + 1))
    a.salu("s_mov_b32 s%d, 0x%x" % (dst + 2, size))
    a.salu("s_mov_b32 s%d, 0x00020000" % (dst + 3))

def producer(a, is_k):
    ring = KRING if is_k else VRING
    if PPRIO:
        a.raw("s_setprio %d" % PPRIO)
    sr = SRD_K if is_k else SRD_V
    a.valu("v_and_b32 v3, 15, v1", [3], [1])
    a.valu("v_lshlrev_b32 v2, 10, v3", [2], [3])
    a.valu("v_lshrrev_b32 v3, 4, v1", [3], [1])
    a.valu("v_lshlrev_b32 v3, 4, v3", [3], [3])
    a.valu("v_add_u32 v2, v2, v3", [2], [2, 3])
    a.valu("v_lshrrev_b32 v8, 4, v1", [8], [1])
    a.valu("v_and_b32 v9, 15, v1", [9], [1])
    a.valu("v_lshlrev_b32 v10, 8, v8", [10], [8])
    for ii in range(4):
        if is_k:
            a.valu("v_add_u32 v11, %d, v8" % (4 * ii), [11], [8])
        else:
            a.valu("v_lshlrev_b32 v11, 2, v8", [11], [8])
            a.valu("v_or_b32 v11, %d, v11" % ii, [11], [11])
        a.valu("v_xor_b32 v11, v9, v11", [11], [9, 11])
        a.valu("v_lshlrev_b32 v11, 4, v11", [11], [11])
        a.valu("v_add_u32 v%d, v10, v11" % (4 + ii), [4 + ii], [10, 11])
    a.salu("s_lshl_b32 s76, s5, 15")
    a.salu("s_lshl_b32 s77, s2, 17")
    s0 = 0 if is_k else 16
    for s in range(s0, s0 + 16):
        a.salu("s_add_u32 s78, s76, %d" % ((s >> 1) * 64 + (s & 1) * 16384))
        a.salu("s_mov_b32 m0, %d" % (XO + s * 1024), swr=["m0"])
        a.ins("dma", "buffer_load_dwordx4 v2, s[%d:%d], s78 offen lds" % (SRD_X, SRD_X + 3), rd=[2], uses_m0=True)

    a.valu("v_lshlrev_b32 v12, 4, v1", [12], [1])
    a.salu("s_lshl_b32 s79, s5, 17")
    a.salu("s_lshl_b32 s78, s4, 10")
    a.salu("s_add_u32 s79, s79, s78")
    for r in range(8):
        rr = r if is_k else r + 8
        a.salu("s_add_u32 s78, s79, %d" % (rr * 8192))
        d = 32 + 4 * r
        a.ins("vld", "buffer_load_dwordx4 v[%d:%d], v12, s[%d:%d], s78 offen" % (d, d + 3, SRD_WQ, SRD_WQ + 3), rd=[12], wr=R(d, 4))

    def wo_prefetch():
        a.salu("s_lshl_b32 s79, s4, 19")
        a.salu("s_lshl_b32 s78, s5, 14")
        a.salu("s_add_u32 s79, s79, s78")
        for r in range(16):
            a.salu("s_add_u32 s78, s79, %d" % (r * 1024))
            d = 160 + 4 * r
            a.ins("vld", "buffer_load_dwordx4 v[%d:%d], v12, s[%d:%d], s78 offen" % (d, d + 3, SRD_WO, SRD_WO + 3), rd=[12], wr=R(d, 4))

    b0_done = [False]
    def tile(j):
        if j == 4:
            lbase = XO + (0 if is_k else 16384)
        else:
            lbase = ring + (j if j < 4 else j - 5) * 16384
        for g in range(4):
            a.salu("s_add_u32 s78, s77, %d" % (j * 16384 + g * 4096))
            a.salu("s_mov_b32 m0, %d" % (lbase + g * 4096), swr=["m0"])
            for ii in range(4):
                off = (" offset:%d" % (ii * 1024)) if ii else ""
                THR = int(os.environ.get("THR", "0"))
                if THR and j < 4 and b0_done[0] and len(a.vm) >= THR:
                    a.wait_vm(THR - 1)
                a.ins("dma", "buffer_load_dwordx4 v%d, s[%d:%d], s78 offen%s nt lds" % (4 + ii, sr, sr + 3, off),
                      rd=[4 + ii], uses_m0=True)

    def lbase_of(j):
        if j == 4:
            return XO + (0 if is_k else 16384)
        return ring + (j if j < 4 else j - 5) * 16384
    def rload(j, rb):
        for g in range(4):
            a.salu("s_add_u32 s78, s77, %d" % (j * 16384 + g * 4096))
            for ii in range(4):
                off = (" offset:%d" % (ii * 1024)) if ii else ""
                d = rb + (g * 4 + ii) * 4
                a.ins("vld", "buffer_load_dwordx4 v[%d:%d], v%d, s[%d:%d], s78 offen%s nt" % (d, d + 3, 4 + ii, sr, sr + 3, off),
                      rd=[4 + ii], wr=R(d, 4))
    def rwrite(j, rb):
        a.valu("v_add_u32 v15, 0x%x, v12" % lbase_of(j), [15], [12])
        for k in range(16):
            d = rb + 4 * k
            a.ins("dsw", "ds_write_b128 v15, v[%d:%d] offset:%d" % (d, d + 3, k * 1024), rd=[15] + R(d, 4))
        a.wait_lg(0)

    def stage_setup():
        a.valu("v_lshrrev_b32 v16, 5, v1", [16], [1])
        a.valu("v_lshlrev_b32 v13, 14, v16", [13], [16])
        a.valu("v_lshrrev_b32 v16, 4, v1", [16], [1])
        a.valu("v_and_b32 v16, 1, v16", [16], [16])
        a.valu("v_lshlrev_b32 v16, 12, v16", [16], [16])
        a.valu("v_add_u32 v13, v13, v16", [13], [13, 16])
        a.valu("v_and_b32 v16, 15, v1", [16], [1])
        a.valu("v_lshlrev_b32 v16, 4, v16", [16], [16])
        a.valu("v_add_u32 v13, v13, v16", [13], [13, 16])
        a.valu("v_add_u32 v14, 0x2000, v13", [14], [13])
        a.salu("s_lshr_b32 s72, s5, 1")
    def stage(pos, half):
        a.salu("s_add_u32 s73, s72, %d" % pos)
        a.salu("s_and_b32 s73, s73, 15")
        a.salu("s_lshl_b32 s73, s73, 15")
        a.salu("s_lshl_b32 s74, s4, 19")
        a.salu("s_or_b32 s73, s73, s74")
        for w1 in range(2):
            w = 2 * half + w1
            a.salu("s_add_u32 s74, s73, %d" % (w * 256))
            for aa in range(2):
                a.salu("s_mov_b32 m0, %d" % (STG_REG[pos][half] + w1 * 8192 + aa * 4096), swr=["m0"])
                for rr in range(4):
                    off = (" offset:%d" % (rr * 1024)) if rr else ""
                    a.ins("dma", "buffer_load_dwordx4 v%d, s[%d:%d], s74 offen%s lds" % (13 + aa, SRD_WO, SRD_WO + 3, off),
                          rd=[13 + aa], uses_m0=True)

    pst = [-int(os.environ.get("PSKIP", "0"))]
    def B():
        if PROF and pst[0] < 8:
            k = pst[0]; pst[0] += 1
            if k >= 0:
                a.raw("s_memrealtime s[%d:%d]" % (80 + 2 * k, 81 + 2 * k))
        a.barrier()
        b0_done[0] = True
    W = a.wait_vm
    LATE = os.environ.get("LATE", "")
    SPF = [int(x) for x in os.environ.get("SPF", "").split(",") if x]
    def sparse():
        if not SPF:
            return 0
        a.valu("v_lshlrev_b32 v17, 7, v1", [17], [1])
        n = 0
        for j in SPF:
            for h in range(2):
                a.salu("s_add_u32 s78, s77, %d" % (j * 16384 + h * 8192))
                a.ins("vld", "buffer_load_dword v%d, v17, s[%d:%d], s78 offen" % (200 + n, sr, sr + 3), rd=[17], wr=[200 + n])
                n += 1
        return n
    def start():
        if LATE == "":
            tile(0); tile(1); W(32); B()
            tile(2); tile(3); n = sparse(); W(32 + n); B()
            if n:
                W(32)
        else:
            W(int(LATE)); B()
            tile(0); tile(1); tile(2); tile(3); W(32); B()
    RST = int(os.environ.get("RST", "0"))
    RA, RB = 32, 96
    if RST:
        assert STG and LATE == ""
        tile(0); tile(1); W(32); B()
        tile(2); tile(3); rload(4, RA); rload(5, RB); W(64); B()
        if is_k:
            rwrite(4, RA); rload(6, RA); B()
            rwrite(5, RB); rload(7, RB); B()
            B()
            B()
            stage_setup()
            rwrite(6, RA); wo_prefetch(); stage(13, 0); B()
            rwrite(7, RB); stage(13, 1); B()
            stage(14, 0); B()
            B()
            B()
            W(0); B()
        else:
            rwrite(4, RA); rload(6, RA); B()
            B()
            B()
            rwrite(5, RB); rload(7, RB); B()
            B()
            rwrite(6, RA); B()
            stage_setup()
            rwrite(7, RB); stage(14, 1); B()
            stage(15, 0); B()
            stage(15, 1); B()
            W(0); B()
    elif is_k:
        start()
        tile(4); B()
        tile(5); W(48); B()
        tile(6); W(48); B()
        tile(7); W(48); B()
        if STG:
            stage_setup()
            wo_prefetch(); stage(13, 0); W(64); B()
            stage(13, 1); W(64); B()
            stage(14, 0); W(64); B()
            B()
            B()
            W(0); B()
        else:
            wo_prefetch(); W(48); B()
            W(32); B()
            W(16); B()
            W(0)
    else:
        start()
        tile(4); B()
        B()
        W(32); B()
        tile(5); W(32); B()
        tile(6); W(32); B()
        tile(7); W(32); B()
        if STG:
            stage_setup()
            stage(14, 1); W(32); B()
            stage(15, 0); W(32); B()
            stage(15, 1); B()
            W(0); B()
        else:
            W(16); B()
            W(0); B()
    if PROF:
        a.raw("s_waitcnt lgkmcnt(0)")
        a.salu("s_lshl_b32 s76, s2, 8")
        a.salu("s_add_u32 s76, s76, 0x1000000")
        a.valu("v_mov_b32 v253, 0", [253], [])
        for k in range(8):
            a.valu("v_mov_b32 v%d, s%d" % (240 + k, 80 + 2 * k), [240 + k], [])
            a.ins("vst", "buffer_store_dword v%d, v253, s[%d:%d], s76 offen offset:%d" % (240 + k, SRD_WS, SRD_WS + 3, (64 if is_k else 128) + 4 * k), rd=[240 + k, 253])
    a.raw("s_endpgm")

V_WQOFF = 2
V_WOOFF = 3
V_XO = 5
V_XOW = 14
V_L = 8
V_ALPHA = 9
V_T0, V_T1 = 10, 15
V_M = [6, 12]
V_MC = [7, 11]
V_SUM = [248, 249, 250, 251]
V_ST = 13
KADDR = 16
VADDR = 24
QF = 32
OACC = 64
SBUF = 128
FRAG = 192
LBUF = 128
NST = int(os.environ.get("NST", "3"))
def sreg(st, r):
    if st < 3:
        return LBUF + st * 32 + 4 * r
    return (16 + 4 * r) if r < 4 else (48 + 4 * (r - 4))
AFR = 224
BFR = 32

def proj_phase(a, which):
    def perms(s, j):
        sel = S_SELLO if (j & 1) == 0 else S_SELHI
        q = j >> 1
        for p in range(4):
            lo = sreg(s % NST, 2 * p) + q
            hi = sreg(s % NST, 2 * p + 1) + q
            d = AFR + 4 * j + p
            a.valu("v_perm_b32 v%d, v%d, v%d, s%d" % (d, hi, lo, sel), [d], [hi, lo])
    def bread(s):
        if ROT:
            t = V_T0 if (s & 1) == 0 else V_T1
            a.valu("v_add_u32 v%d, s%d, v%d" % (t, S_XOFF, V_XO), [t], [V_XO])
            a.salu("s_add_u32 s%d, s%d, 0x800" % (S_XOFF, S_XOFF))
            a.salu("s_and_b32 s%d, s%d, 0x7fff" % (S_XOFF, S_XOFF))
            for nq in range(2):
                d = BFR + (s & 1) * 8 + 4 * nq
                a.ins("dsr", "ds_read_b128 v[%d:%d], v%d offset:%d" % (d, d + 3, t, nq * 1024), rd=[t], wr=R(d, 4))
            return
        for nq in range(2):
            d = BFR + (s & 1) * 8 + 4 * nq
            a.ins("dsr", "ds_read_b128 v[%d:%d], v%d offset:%d" % (d, d + 3, V_XO, (2 * s + nq) * 1024), rd=[V_XO], wr=R(d, 4))
    bread(0)
    bread(1)
    for j in range(8):
        perms(0, j)
    for s in range(16):
        for j in range(8):
            for nq in range(2):
                a.mfma16(OACC + (2 * j + nq) * 4, AFR + 4 * j, BFR + (s & 1) * 8 + 4 * nq, zero=(s == 0))
            if j == 7 and s + 2 < 16:
                bread(s + 2)
            if s + 1 < 16:
                perms(s + 1, j)
            if s + NST < 16:
                proj_load1(a, which, s + NST, j)

def proj_load1(a, which, s, r):
    d = sreg(s % NST, r)
    if which == 'q':
        a.ins("vld", "buffer_load_dwordx4 v[%d:%d], v%d, s[%d:%d], s%d offen" % (d, d + 3, V_WQOFF, SRD_WQ, SRD_WQ + 3, S_ROW + r),
              rd=[V_WQOFF], wr=R(d, 4))
        a.salu("s_add_u32 s%d, s%d, 0x40000" % (S_ROW + r, S_ROW + r))
        if ROT:
            a.salu("s_and_b32 s%d, s%d, 0x3fffff" % (S_ROW + r, S_ROW + r))
    else:
        if STG and s >= 13:
            if r == 0:
                a.valu("v_add_u32 v6, s%d, v%d" % (S_ROW + s - 13, V_ST), [6], [V_ST])
            a.ins("dsr", "ds_read_b128 v[%d:%d], v6 offset:%d" % (d, d + 3, r * 1024), rd=[6], wr=R(d, 4))
            return
        aa, rr = r >> 2, r & 3
        off = (" offset:%d" % (rr * 1024)) if rr else ""
        a.ins("vld", "buffer_load_dwordx4 v[%d:%d], v%d, s[%d:%d], s%d offen%s" % (d, d + 3, V_WOOFF + aa, SRD_WO, SRD_WO + 3, S_WOOFF, off),
              rd=[V_WOOFF + aa], wr=R(d, 4))
        if r == 7:
            if ROT:
                a.salu("s_add_u32 s%d, s%d, 0x8000" % (S_WST, S_WST))
                a.salu("s_and_b32 s%d, s%d, 0x7ffff" % (S_WST, S_WST))
                a.salu("s_or_b32 s%d, s%d, s%d" % (S_WOOFF, S_WST, S_WBASE))
            else:
                a.salu("s_add_u32 s%d, s%d, 0x8000" % (S_WOOFF, S_WOOFF))

def proj_loads(a, which, s):
    for r in range(8):
        proj_load1(a, which, s, r)

CBLK = 224
S_ONES = 69
S_XOFF = 78
S_WST = 79
S_WBASE = 77
ROT = int(os.environ.get("ROT", "1"))

def hz_save(a):
    return (a.slot, dict(a.w_valu), dict(a.w_trans), dict(a.w_mfma), list(a.vm), list(a.lg))
def hz_restore(a, sv):
    assert a.vm == sv[4] and a.lg == sv[5]
    a.slot, a.w_valu, a.w_trans, a.w_mfma = sv[0], sv[1], sv[2], sv[3]

def softmax_items(i):
    it = []
    sb = SBUF + 32 * (i & 1)
    BIG = 1 << 20
    def add(cost, fn, before=BIG):
        it.append((cost, before, fn))
    def v(text, wr, rd, cost=4, before=BIG):
        add(cost, lambda a: a.valu(text, wr, rd), before)
    def tr(text, wr, rd):
        add(8, lambda a: a.trans(text, wr, rd))
    tA, tB = V_T0, V_T1
    hb = 0 if i == 0 else 16
    chains = []
    for (t, base) in ((tA, sb), (tB, sb + 16)):
        c = [("v_max3_f32 v%d, v%d, v%d, v%d" % (t, base, base + 1, base + 2), [t], [base, base + 1, base + 2])]
        for k in range(3, 15, 2):
            c.append(("v_max3_f32 v%d, v%d, v%d, v%d" % (t, t, base + k, base + k + 1), [t], [t, base + k, base + k + 1]))
        chains.append(c)
    for x, y in zip(*chains):
        v(*x, before=hb); v(*y, before=hb)
    v("v_max3_f32 v%d, v%d, v%d, v%d" % (tA, tA, sb + 15, sb + 31), [tA], [tA, sb + 15, sb + 31], before=hb)
    v("v_max_f32 v%d, v%d, v%d" % (tA, tA, tB), [tA], [tA, tB], before=hb)
    if i == 0:
        v("v_mov_b32 v%d, v%d" % (tB, tA), [tB], [tA], before=0)
        add(4, lambda a: a.ins("perml", "v_permlane32_swap_b32 v%d, v%d" % (tA, tB), rd=[tA, tB], wr=[tA, tB]), 0)
        v("v_max_f32 v%d, v%d, v%d" % (tA, tA, tB), [tA], [tA, tB], before=0)
        for k in range(16):
            v("v_sub_f32 v%d, 0, v%d" % (CBLK + k, tA), [CBLK + k], [tA], before=0)
    else:
        def upd(a):
            a.ins("valu", "v_cmp_lt_f32 vcc, s%d, v%d" % (S_TAU, tA), rd=[tA], swr=["vcc"])
            a.raw("s_cbranch_vccz L_noupd%d" % i)
            sv = hz_save(a)
            a.raw("s_nop 2", 3)
            a.valu("v_mov_b32 v%d, v%d" % (tB, tA), [tB], [tA])
            a.ins("perml", "v_permlane32_swap_b32 v%d, v%d" % (tA, tB), rd=[tA, tB], wr=[tA, tB])
            a.valu("v_max_f32 v%d, v%d, v%d" % (tA, tA, tB), [tA], [tA, tB])
            a.ins("valu", "v_cmp_lt_f32 vcc, s%d, v%d" % (S_TAU, tA), rd=[tA], swr=["vcc"])
            a.ins("valu", "v_cndmask_b32 v%d, 0, v%d, vcc" % (tA, tA), rd=[tA], wr=[tA], srd=["vcc"])
            a.trans("v_exp_f32 v%d, -v%d" % (V_ALPHA, tA), [V_ALPHA], [tA])
            for k in range(32):
                a.valu("v_sub_f32 v%d, v%d, v%d" % (sb + k, sb + k, tA), [sb + k], [sb + k, tA])
            for k in range(16):
                a.valu("v_sub_f32 v%d, v%d, v%d" % (CBLK + k, CBLK + k, tA), [CBLK + k], [CBLK + k, tA])
            for r in V_SUM:
                a.valu("v_mul_f32 v%d, v%d, v%d" % (r, r, V_ALPHA), [r], [r, V_ALPHA])
            a.salu("s_mov_b64 s[%d:%d], -1" % (S_FLAG, S_FLAG + 1))
            a.raw("s_nop 1", 2)
            a.label("L_noupd%d" % i)
            hz_restore(a, sv)
        add(8, upd, 16)
    for g in range(4):
        b8 = sb + 8 * g
        def e(k):
            r = b8 + k
            if i == 0:
                v("v_sub_f32 v%d, v%d, v%d" % (r, r, tA), [r], [r, tA])
            tr("v_exp_f32 v%d, v%d" % (r, r), [r], [r])
        def c(p):
            d = b8 + p
            v("v_cvt_pk_bf16_f32 v%d, v%d, v%d" % (d, b8 + 2 * p, b8 + 2 * p + 1), [d], [b8 + 2 * p, b8 + 2 * p + 1])
        def dt(p):
            d = b8 + p
            sr = V_SUM[p]
            if i == 0 and g == 0:
                v("v_dot2_f32_bf16 v%d, v%d, s%d, 0" % (sr, d, S_ONES), [sr], [d])
            else:
                v("v_dot2_f32_bf16 v%d, v%d, s%d, v%d" % (sr, d, S_ONES, sr), [sr], [d, sr])
        e(0); e(1); e(2); c(0); e(3); e(4); c(1); e(5); e(6); c(2); e(7); dt(0); c(3); dt(1); dt(2); dt(3)
    return it

frag_ctr = [0]

def iter_items(i):
    M = []
    if 1 <= i <= 8:
        j = i - 1
        slot = 0 if j == 4 else (j if j < 4 else j - 5)
        far = (XO + 16384 - VRING) if j == 4 else 0
        pb = SBUF + 32 * (j & 1)
        for t in range(4):
            for u in range(4):
                f = FRAG + 4 * (frag_ctr[0] % 8); frag_ctr[0] += 1
                def ld(a, f=f, u=u, t=t, slot=slot, far=far):
                    for aa in range(2):
                        va = VADDR + 2 * u + aa
                        if far and t == 0:
                            a.valu("v_add_u32 v%d, 0x%x, v%d" % (va, far, va), [va], [va])
                        a.ins("dsr", "ds_read_b64_tr_b16 v[%d:%d], v%d offset:%d" % (f + 2 * aa, f + 2 * aa + 1, va, slot * 16384 + t * 4096 + aa * 2048),
                              rd=[va], wr=[f + 2 * aa, f + 2 * aa + 1])
                        if far and t == 3:
                            a.valu("v_subrev_u32 v%d, 0x%x, v%d" % (va, far, va), [va], [va])
                pf = pb + 16 * (t >> 1) + 8 * (t & 1)
                def mm(a, f=f, u=u, pf=pf, z=(j == 0 and t == 0)):
                    a.mfma(OACC + 16 * u, f, pf, zero=z)
                M.append((ld, mm, 8, f))
    if -1 <= i <= 6:
        j = i + 1
        slot = 0 if j == 4 else (j if j < 4 else j - 5)
        far = (XO - KRING) if j == 4 else 0
        sb = SBUF + 32 * (j & 1)
        for tt in range(2):
            for ez in range(8):
                f = FRAG + 4 * (frag_ctr[0] % 8); frag_ctr[0] += 1
                def ld(a, f=f, ez=ez, tt=tt, slot=slot, far=far):
                    ka = KADDR + ez
                    if far and tt == 0:
                        a.valu("v_add_u32 v%d, 0x%x, v%d" % (ka, far, ka), [ka], [ka])
                    a.ins("dsr", "ds_read_b128 v[%d:%d], v%d offset:%d" % (f, f + 3, ka, slot * 16384 + tt * 8192),
                          rd=[ka], wr=R(f, 4))
                    if far and tt == 1:
                        a.valu("v_subrev_u32 v%d, 0x%x, v%d" % (ka, far, ka), [ka], [ka])
                def mm(a, f=f, ez=ez, tt=tt, sb=sb, j=j):
                    if ez == 0 and j >= 1:
                        a.mfma_c(sb + 16 * tt, f, QF + 4 * ez, CBLK)
                    else:
                        a.mfma(sb + 16 * tt, f, QF + 4 * ez, zero=(ez == 0))
                M.append((ld, mm, 4, f))
    return M

DPRE = int(os.environ.get("DPRE", "5"))
PAIR = int(os.environ.get("PAIR", "2"))

def run_phase2(a):
    import copy
    its = list(range(-1, 9))
    Ms = {i: iter_items(i) for i in its}
    flat = [(i, n) for i in its for n in range(len(Ms[i]))]
    pos = {k: idx for idx, k in enumerate(flat)}
    issued = [0]
    def load_upto(idx):
        while issued[0] <= idx and issued[0] < len(flat):
            i, n = flat[issued[0]]
            Ms[i][n][0](a)
            issued[0] += 1
    for i in its:
        a.barrier()
        stamp(a, "it%d" % i)
        a.comment("---- iteration %d" % i)
        M = Ms[i]
        V = softmax_items(i) if 0 <= i <= 7 else []
        nM = len(M)
        tot = sum(x[0] for x in V)
        vi = 0; cum = 0
        if i == -1:
            load_upto(DPRE - 1)
        for n in range(nM):
            while vi < len(V) and any(x[1] <= n for x in V[vi:]):
                V[vi][2](a); cum += V[vi][0]; vi += 1
            if PAIR and n % PAIR == 0:
                regs = set()
                for k in range(n, min(n + PAIR, nM)):
                    regs |= set(R(M[k][3], 4))
                a._auto_wait(regs)
            M[n][1](a)
            load_upto(pos[(i, n)] + DPRE)
            target = tot * (n + 1) / (nM - 1)
            while vi < len(V) and cum + V[vi][0] / 2 <= target:
                V[vi][2](a); cum += V[vi][0]; vi += 1
        while vi < len(V):
            V[vi][2](a); vi += 1
        if 1 <= i <= 7:
            a.raw("s_cmp_lg_u64 s[%d:%d], 0" % (S_FLAG, S_FLAG + 1))
            a.raw("s_cbranch_scc0 L_noresc%d" % i)
            saved = hz_save(a)
            for r in range(OACC, OACC + 64):
                a.valu("v_mul_f32 v%d, v%d, v%d" % (r, r, V_ALPHA), [r], [r, V_ALPHA])
            a.salu("s_mov_b64 s[%d:%d], 0" % (S_FLAG, S_FLAG + 1))
            a.raw("s_nop 1")
            a.label("L_noresc%d" % i)
            hz_restore(a, saved)
        stamp(a, "e%d" % i)

def kv_addr(a):
    a.valu("v_and_b32 v16, 31, v1", [16], [1])
    a.valu("v_lshrrev_b32 v17, 5, v1", [17], [1])
    a.valu("v_lshrrev_b32 v18, 4, v1", [18], [1])
    a.valu("v_and_b32 v18, 1, v18", [18], [18])
    a.valu("v_lshrrev_b32 v19, 2, v1", [19], [1])
    a.valu("v_and_b32 v19, 3, v19", [19], [19])
    a.valu("v_and_b32 v20, 3, v1", [20], [1])
    a.valu("v_lshrrev_b32 v21, 1, v20", [21], [20])
    a.valu("v_xor_b32 v21, v21, v17", [21], [21, 17])
    a.valu("v_lshlrev_b32 v22, 2, v19", [22], [19])
    a.valu("v_or_b32 v21, v21, v22", [21], [21, 22])
    a.valu("v_lshlrev_b32 v22, 1, v18", [22], [18])
    a.valu("v_or_b32 v21, v21, v22", [21], [21, 22])
    a.valu("v_lshlrev_b32 v21, 4, v21", [21], [21])
    a.valu("v_and_b32 v20, 1, v20", [20], [20])
    a.valu("v_lshlrev_b32 v20, 3, v20", [20], [20])
    a.valu("v_or_b32 v21, v21, v20", [21], [21, 20])
    a.valu("v_lshlrev_b32 v22, 2, v17", [22], [17])
    a.valu("v_add_u32 v22, v22, v19", [22], [22, 19])
    a.valu("v_lshlrev_b32 v22, 8, v22", [22], [22])
    a.valu("v_add_u32 v21, v21, v22", [21], [21, 22])
    a.valu("v_add_u32 v21, 0x%x, v21" % VRING, [21], [21])
    for u in range(4):
        for aa in range(2):
            d = VADDR + 2 * u + aa
            a.valu("v_xor_b32 v%d, 0x%x, v21" % (d, (4 * u + 2 * aa) << 4), [d], [21])
    a.valu("v_and_b32 v18, 15, v16", [18], [16])
    a.valu("v_lshlrev_b32 v19, 3, v17", [19], [17])
    a.valu("v_xor_b32 v18, v18, v19", [18], [18, 19])
    a.valu("v_lshlrev_b32 v18, 4, v18", [18], [18])
    a.valu("v_lshlrev_b32 v19, 8, v16", [19], [16])
    a.valu("v_add_u32 v15, v18, v19", [15], [18, 19])
    for e in range(8):
        d = KADDR + e
        a.valu("v_xor_b32 v%d, 0x%x, v15" % (d, e << 4), [d], [15])

def consumer(a):
    a.valu("v_and_b32 v16, 31, v1", [16], [1])
    a.valu("v_lshrrev_b32 v17, 5, v1", [17], [1])
    a.salu("s_lshl_b32 s76, s4, 2")
    a.salu("s_add_u32 s76, s76, s3")
    a.salu("s_lshl_b32 s76, s76, 8")
    a.valu("v_lshrrev_b32 v19, 4, v1", [19], [1])
    a.valu("v_lshlrev_b32 v2, 16, v19", [2], [19])
    a.valu("v_and_b32 v18, 15, v1", [18], [1])
    a.valu("v_lshlrev_b32 v18, 4, v18", [18], [18])
    a.valu("v_add_u32 v2, v2, v18", [2], [2, 18])
    a.valu("v_add_u32 v2, s76, v2", [2], [2])
    if ROT:
        a.salu("s_lshr_b32 s%d, s5, 1" % S_XOFF)
        a.salu("s_lshl_b32 s76, s%d, 18" % S_XOFF)
        for r in range(8):
            a.salu("s_add_u32 s%d, s76, %d" % (S_ROW + r, r * 8192))
        a.salu("s_lshl_b32 s%d, s%d, 15" % (S_WST, S_XOFF))
        a.salu("s_lshl_b32 s%d, s%d, 11" % (S_XOFF, S_XOFF))
    else:
        for r in range(8):
            a.salu("s_mov_b32 s%d, %d" % (S_ROW + r, r * 8192))
    a.salu("s_lshl_b32 s76, s3, 8")
    a.valu("v_lshlrev_b32 v3, 14, v17", [3], [17])
    a.valu("v_and_b32 v20, 1, v19", [20], [19])
    a.valu("v_lshlrev_b32 v20, 12, v20", [20], [20])
    a.valu("v_add_u32 v3, v3, v20", [3], [3, 20])
    a.valu("v_add_u32 v3, v3, v18", [3], [3, 18])
    a.valu("v_add_u32 v3, s76, v3", [3], [3])
    a.valu("v_add_u32 v4, 0x2000, v3", [4], [3])
    a.salu("s_lshl_b32 s%d, s4, 19" % S_WOOFF)
    if ROT:
        a.salu("s_mov_b32 s%d, s%d" % (S_WBASE, S_WOOFF))
        a.salu("s_or_b32 s%d, s%d, s%d" % (S_WOOFF, S_WST, S_WBASE))
    a.valu("v_lshlrev_b32 v13, 4, v1", [13], [1])
    a.valu("v_add_u32 v5, 0x%x, v13" % XO, [5], [13])
    a.salu("s_lshl_b32 s76, s3, 13")
    a.salu("s_add_u32 s76, s76, 0x%x" % (OFR if STG else XO))
    a.valu("v_lshrrev_b32 v20, 4, v16", [20], [16])
    a.valu("v_lshlrev_b32 v20, 10, v20", [20], [20])
    a.valu("v_lshlrev_b32 v21, 8, v17", [21], [17])
    a.valu("v_add_u32 v20, v20, v21", [20], [20, 21])
    a.valu("v_add_u32 v20, v20, v18", [20], [20, 18])
    a.valu("v_add_u32 v14, s76, v20", [14], [20])
    a.salu("s_lshl_b32 s76, s2, 2")
    a.salu("s_add_u32 s76, s76, s3")
    a.salu("s_lshl_b32 s76, s76, 13")
    for j in range(2):
        a.salu("s_add_u32 s%d, s76, %d" % (S_ST + j, j * 4096))
    stamp(a, "setup")
    if EARLYQ:
        for s in range(NST):
            proj_loads(a, 'q', s)
    if PROF and "first" in PST:
        a.raw("s_waitcnt vmcnt(%d)" % (8 * NST - 1))
        stamp(a, "first")
    stamp(a, "preB0")
    a.barrier()
    stamp(a, "B0")
    if not EARLYQ:
        for s in range(NST):
            proj_loads(a, 'q', s)
    proj_phase(a, 'q')
    for i in range(4):
        for nq in range(2):
            for p in range(4):
                t0 = OACC + (2 * (2 * p) + nq) * 4 + i
                t1 = OACC + (2 * (2 * p + 1) + nq) * 4 + i
                d = QF + 4 * (4 * nq + i) + p
                a.valu("v_mul_f32 v%d, s%d, v%d" % (t0, S_C, t0), [t0], [t0])
                a.valu("v_mul_f32 v%d, s%d, v%d" % (t1, S_C, t1), [t1], [t1])
                a.valu("v_cvt_pk_bf16_f32 v%d, v%d, v%d" % (d, t0, t1), [d], [t0, t1])
    for i in range(4):
        for p in range(4):
            da = QF + 4 * i + p
            db = QF + 4 * (4 + i) + p
            a.ins("perml", "v_permlane16_swap_b32 v%d, v%d" % (da, db), rd=[da, db], wr=[da, db])
    kv_addr(a)
    stamp(a, "ph1")
    run_phase2(a)
    if STG:
        a.valu("v_subrev_u32 v%d, 0x%x, v%d" % (V_XO, XO - OFR, V_XO), [V_XO], [V_XO])
        a.salu("s_and_b32 s76, s3, 1")
        a.salu("s_lshl_b32 s76, s76, 13")
        a.raw("s_cmp_ge_u32 s3, 2")
        for pos in (13, 14, 15):
            a.salu("s_mov_b32 s64, 0x%x" % STG_REG[pos][0])
            a.salu("s_mov_b32 s65, 0x%x" % STG_REG[pos][1])
            a.salu("s_cselect_b32 s%d, s65, s64" % (S_ROW + pos - 13))
        for pos in (13, 14, 15):
            a.salu("s_add_u32 s%d, s%d, s76" % (S_ROW + pos - 13, S_ROW + pos - 13))
    for s in range(NST):
        proj_loads(a, 'o', s)
    a.valu("v_add_f32 v%d, v%d, v%d" % (V_L, V_SUM[0], V_SUM[1]), [V_L], [V_SUM[0], V_SUM[1]])
    a.valu("v_add_f32 v%d, v%d, v%d" % (V_T1, V_SUM[2], V_SUM[3]), [V_T1], [V_SUM[2], V_SUM[3]])
    a.valu("v_add_f32 v%d, v%d, v%d" % (V_L, V_L, V_T1), [V_L], [V_L, V_T1])
    a.valu("v_mov_b32 v%d, v%d" % (V_T1, V_L), [V_T1], [V_L])
    a.ins("perml", "v_permlane32_swap_b32 v%d, v%d" % (V_L, V_T1), rd=[V_L, V_T1], wr=[V_L, V_T1])
    a.valu("v_add_f32 v%d, v%d, v%d" % (V_L, V_L, V_T1), [V_L], [V_L, V_T1])
    a.trans("v_rcp_f32 v%d, v%d" % (V_L, V_L), [V_L], [V_L])
    for u in range(4):
        for t in range(2):
            for p in range(4):
                r0 = OACC + 16 * u + 8 * t + 2 * p
                a.valu("v_mul_f32 v%d, v%d, v%d" % (r0, r0, V_L), [r0], [r0, V_L])
                a.valu("v_mul_f32 v%d, v%d, v%d" % (r0 + 1, r0 + 1, V_L), [r0 + 1], [r0 + 1, V_L])
            for p in range(4):
                r0 = OACC + 16 * u + 8 * t + 2 * p
                d = AFR + 4 * (2 * u + t) + p
                a.valu("v_cvt_pk_bf16_f32 v%d, v%d, v%d" % (d, r0, r0 + 1), [d], [r0, r0 + 1])
            d = AFR + 4 * (2 * u + t)
            a.ins("dsw", "ds_write_b128 v%d, v[%d:%d] offset:%d" % (V_XOW, d, d + 3, u * 2048 + t * 512), rd=[V_XOW] + R(d, 4))
    a.wait_lg(0)
    a.barrier()
    stamp(a, "B11")
    proj_phase(a, 'o')
    TMP = LBUF
    for nq in range(2):
        for i in range(4):
            for pr in range(4):
                d = TMP + (nq * 4 + i) * 4 + pr
                x0 = OACC + (2 * (2 * pr) + nq) * 4 + i
                x1 = OACC + (2 * (2 * pr + 1) + nq) * 4 + i
                a.valu("v_cvt_pk_bf16_f32 v%d, v%d, v%d" % (d, x0, x1), [d], [x0, x1])
            d = TMP + (nq * 4 + i) * 4
            off = (" offset:%d" % (i * 1024)) if i else ""
            a.ins("vst", "buffer_store_dwordx4 v[%d:%d], v%d, s[%d:%d], s%d offen%s" % (d, d + 3, V_ST, SRD_WS, SRD_WS + 3, S_ST + nq, off),
                  rd=[V_ST] + R(d, 4), wide_store=True)
    stamp(a, "ph3")
    stamp_flush(a)
    a.raw("s_endpgm")

def kernel1():
    out = []
    a = Asm()
    a.label(K1)
    if PROF:
        a.raw("s_memrealtime s[96:97]")
    a.raw("s_cmp_ge_u32 s2, 256")
    a.raw("s_cbranch_scc1 L_k1_end")
    a.raw("s_load_dwordx16 s[16:31], s[0:1], 0")
    a.valu("v_and_b32 v1, 63, v0", [1], [0])
    a.valu("v_lshrrev_b32 v2, 6, v0", [2], [0])
    a.ins("rfl", "v_readfirstlane_b32 s3, v2", rd=[2], swr=["s3"])
    a.salu("s_and_b32 s4, s2, 7")
    a.salu("s_lshr_b32 s5, s2, 3")
    a.salu("s_mov_b32 s%d, 0x05040100" % S_SELLO)
    a.salu("s_mov_b32 s%d, 0x07060302" % S_SELHI)
    a.salu("s_mov_b32 s%d, 0x%08x" % (S_C, f32bits(CSCALE)))
    a.salu("s_mov_b32 s%d, 0x%08x" % (S_TAU, f32bits(TAU)))
    a.salu("s_mov_b32 s%d, 0x3f803f80" % S_ONES)
    a.salu("s_mov_b64 s[%d:%d], 0" % (S_FLAG, S_FLAG + 1))
    a.raw("s_waitcnt lgkmcnt(0)")
    stamp(a, "karg")
    srd(a, 16, SRD_X, 0x100000)
    srd(a, 18, SRD_K, 0x2000000)
    srd(a, 20, SRD_V, 0x2000000)
    srd(a, 22, SRD_WQ, 0x400000)
    srd(a, 24, SRD_WO, 0x400000)
    srd(a, 30, SRD_WS, 0x1010000 if PROF else 0x800000)
    a.raw("s_nop 4")
    a.raw("s_cmp_eq_u32 s3, 4")
    a.raw("s_cbranch_scc1 L_kprod")
    a.raw("s_cmp_eq_u32 s3, 5")
    a.raw("s_cbranch_scc1 L_vprod")
    out.append(a.text())
    c = Asm(); consumer(c); out.append(c.text())
    sys.stderr.write("consumer: %d slots, %d nop states\n" % (c.slot, c.nops))
    p = Asm(); p.label("L_kprod"); producer(p, True); out.append(p.text())
    p = Asm(); p.label("L_vprod"); producer(p, False); out.append(p.text())
    out.append("L_k1_end:\n    s_endpgm\n")
    return "".join(out)

def kernel2():
    a = Asm()
    a.label(K2)
    a.raw("s_cmp_ge_u32 s2, 256")
    a.raw("s_cbranch_scc1 L_k2_end")
    a.raw("s_load_dwordx2 s[16:17], s[0:1], 40")
    a.raw("s_load_dwordx2 s[18:19], s[0:1], 56")
    a.valu("v_and_b32 v1, 63, v0", [1], [0])
    a.valu("v_lshrrev_b32 v2, 6, v0", [2], [0])
    a.ins("rfl", "v_readfirstlane_b32 s3, v2", rd=[2], swr=["s3"])
    a.salu("s_lshr_b32 s5, s2, 3")
    a.salu("s_lshr_b32 s6, s2, 1")
    a.salu("s_and_b32 s6, s6, 3")
    a.salu("s_and_b32 s7, s2, 1")
    a.valu("v_lshlrev_b32 v3, 4, v1", [3], [1])
    a.salu("s_lshl_b32 s8, s5, 18")
    a.salu("s_lshl_b32 s9, s6, 13")
    a.salu("s_add_u32 s8, s8, s9")
    a.salu("s_lshl_b32 s9, s7, 12")
    a.salu("s_add_u32 s8, s8, s9")
    a.salu("s_lshl_b32 s9, s3, 16")
    a.salu("s_add_u32 s8, s8, s9")
    a.salu("s_add_u32 s9, s8, 0x8000")
    a.valu("v_and_b32 v8, 15, v1", [8], [1])
    a.valu("v_lshlrev_b32 v8, 10, v8", [8], [8])
    a.valu("v_lshrrev_b32 v9, 4, v1", [9], [1])
    a.valu("v_lshlrev_b32 v9, 6, v9", [9], [9])
    a.valu("v_add_u32 v8, v8, v9", [8], [8, 9])
    a.salu("s_lshl_b32 s10, s5, 15")
    a.salu("s_lshl_b32 s11, s6, 8")
    a.salu("s_add_u32 s10, s10, s11")
    a.salu("s_lshl_b32 s11, s7, 14")
    a.salu("s_add_u32 s10, s10, s11")
    a.salu("s_lshl_b32 s12, s3, 13")
    a.salu("s_sub_u32 s12, s12, 0x2000")
    a.valu("v_add_u32 v10, s12, v3", [10], [3])
    a.salu("s_mov_b32 s13, 0xffff0000")
    a.raw("s_waitcnt lgkmcnt(0)")
    srd(a, 16, 20, 0x100000)
    srd(a, 18, 24, 0x800000)
    ld = 64
    for hk in range(2):
        for i in range(4):
            d = ld + (hk * 4 + i) * 4
            off = (" offset:%d" % (1024 * i)) if i else ""
            a.ins("vld", "buffer_load_dwordx4 v[%d:%d], v3, s[24:27], s%d offen%s" % (d, d + 3, 8 + hk, off), rd=[3], wr=R(d, 4))
    base = 16
    for k in range(16):
        A, B = ld + k, ld + 16 + k
        lo, hi = base + 2 * k, base + 2 * k + 1
        a.valu("v_lshlrev_b32 v%d, 16, v%d" % (lo, A), [lo], [A])
        a.valu("v_and_b32 v%d, s13, v%d" % (hi, A), [hi], [A])
        a.valu("v_lshlrev_b32 v%d, 16, v%d" % (A, B), [A], [B])
        a.valu("v_and_b32 v%d, s13, v%d" % (B, B), [B], [B])
        a.valu("v_add_f32 v%d, v%d, v%d" % (lo, lo, A), [lo], [lo, A])
        a.valu("v_add_f32 v%d, v%d, v%d" % (hi, hi, B), [hi], [hi, B])
    a.raw("s_cmp_eq_u32 s3, 0")
    a.raw("s_cbranch_scc1 L_k2_w0")
    b = Asm(); b.slot = 1000
    for j in range(8):
        d = base + 4 * j
        b.ins("dsw", "ds_write_b128 v10, v[%d:%d] offset:%d" % (d, d + 3, j * 1024), rd=[10] + R(d, 4))
    b.wait_lg(0)
    b.barrier()
    b.raw("s_endpgm")
    c = Asm(); c.label("L_k2_w0")
    c.barrier()
    for v in range(3):
        for j in range(8):
            d = 64 + (v * 8 + j) * 4
            c.ins("dsr", "ds_read_b128 v[%d:%d], v3 offset:%d" % (d, d + 3, v * 8192 + j * 1024), rd=[3], wr=R(d, 4))
    for v in range(3):
        for k in range(32):
            c.valu("v_add_f32 v%d, v%d, v%d" % (base + k, base + k, 64 + v * 32 + k), [base + k], [base + k, 64 + v * 32 + k])
    o = 160
    for k in range(16):
        c.valu("v_cvt_pk_bf16_f32 v%d, v%d, v%d" % (o + k, base + 2 * k, base + 2 * k + 1), [o + k], [base + 2 * k, base + 2 * k + 1])
    for i in range(4):
        off = (" offset:%d" % (16 * i)) if i else ""
        c.ins("vst", "buffer_store_dwordx4 v[%d:%d], v8, s[20:23], s10 offen%s" % (o + 4 * i, o + 4 * i + 3, off), rd=[8] + R(o + 4 * i, 4), wide_store=True)
    c.label("L_k2_end")
    c.raw("s_endpgm")
    return a.text() + b.text() + c.text()

def desc(name, nv, ns=102):
    return """.amdhsa_kernel %s
  .amdhsa_next_free_vgpr %d
  .amdhsa_next_free_sgpr %d
  .amdhsa_accum_offset %d
  .amdhsa_group_segment_fixed_size 0
  .amdhsa_kernarg_size 64
  .amdhsa_user_sgpr_count 2
  .amdhsa_user_sgpr_kernarg_segment_ptr 1
  .amdhsa_system_sgpr_workgroup_id_x 1
.end_amdhsa_kernel
""" % (name, nv, ns, nv)

def main(path):
    hdr = """; Kernarg layout for this problem (64 bytes, ptrs only, base s[0:1]):
;   offset   0: x   8: k_cache  16: v_cache  24: wq  32: wo  40: d_out  48: d_debug  56: d_ws
; @launch kernel=%s grid=(256,1,1) block=(384,1,1) lds=%d
; @launch kernel=%s grid=(256,1,1) block=(256,1,1) lds=24576
.amdgcn_target "amdgcn-amd-amdhsa--gfx950"
.text
""" % (K1, LDS_BYTES, K2)
    s = hdr
    for nm, body in ((K1, kernel1()), (K2, kernel2())):
        s += ".globl %s\n.p2align 8\n.type %s,@function\n" % (nm, nm) + body
    s += '.section .rodata,"a"\n.p2align 6\n' + desc(K1, 256) + ".p2align 6\n" + desc(K2, 192)
    open(path, "w").write(s)

if __name__ == "__main__":
    main(sys.argv[1] if len(sys.argv) > 1 else "cdna_kernels/%s.s" % NAME)
```
